```python
import torch

def _softmax(x, axis=-1):
    return torch.softmax(x, dim=axis)
def _gelu(x):
    return torch.nn.functional.gelu(x, approximate="tanh")
def _silu(x):
    return torch.nn.functional.silu(x)
def _sigmoid(x):
    return torch.sigmoid(x)
def _layernorm(x, axis=-1, eps=1e-5):
    m = x.mean(dim=axis, keepdim=True)
    v = x.var(dim=axis, keepdim=True, unbiased=False)
    return (x - m) / torch.sqrt(v + eps)
def _scatter_add(tgt, idx, src, axis=0):
    return tgt.clone().index_add_(axis, idx, src)
def _segment_sum(src, seg, n):
    out = torch.zeros((n,) + src.shape[1:], dtype=src.dtype)
    return out.index_add_(0, seg, src)
def _pad(x, pw):
    flat = tuple(v for pair in reversed(pw) for v in pair)
    return torch.nn.functional.pad(x, flat)

kernel_name = 'concat_heads__compressed_kv_cla__linear_kernel_hedgehog__prompt'

def setup_inputs():

    _w = (lambda a: (lambda t: t.to(torch.bfloat16) if t.is_floating_point() else t)(torch.as_tensor(a)))
    def _A_setup():
        B, H, Sq, Sk, D, M = 1, 16, 2048, 2048, 256, 448
        Dc = 4 * D
        return {
            "x": _w((lambda *s: torch.randn(*s, dtype=torch.bfloat16) * 0.8)(B, Sq, M)),
            "c_kv": _w((lambda *s: torch.randn(*s, dtype=torch.bfloat16) * 0.4)(B, Sk, Dc)),
            "w_q": _w((lambda *s: torch.randn(*s, dtype=torch.bfloat16) * 6.4)(M, H, D) * (M ** -0.5)),
            "w_uk": _w((lambda *s: torch.randn(*s, dtype=torch.bfloat16) * 6.4)(Dc, H, D) * (Dc ** -0.5)),
            "w_uv": _w((lambda *s: torch.randn(*s, dtype=torch.bfloat16) * 0.4)(Dc, H, D) * (Dc ** -0.5)),
            "w_o": _w((lambda *s: torch.randn(*s, dtype=torch.bfloat16) * 0.4)(H, D, M) * ((H * D) ** -0.5)),
        }
    _A_in = _A_setup()

    def _B_setup():
        B, S, D, H = 1, 2048, 448, 16
        Dh = D // H
        return {
            "x": _w((lambda *s: torch.randn(*s, dtype=torch.bfloat16) * 0.4)(B, S, D)),
            "wqkv": _w((lambda *s: torch.randn(*s, dtype=torch.bfloat16) * 0.4)(D, 3 * D)),
            "w_phi": _w((lambda *s: torch.randn(*s, dtype=torch.bfloat16) * 0.4)(H, Dh, Dh) * (Dh ** -0.5)),
            "wo": _w((lambda *s: torch.randn(*s, dtype=torch.bfloat16) * 0.05)(D, D)),
        }
    _B_in = _B_setup()

    return {
        "A_x": _A_in["x"],
        "A_c_kv": _A_in["c_kv"],
        "A_w_q": _A_in["w_q"],
        "A_w_uk": _A_in["w_uk"],
        "A_w_uv": _A_in["w_uv"],
        "A_w_o": _A_in["w_o"],
        "B_x": _B_in["x"],
        "B_wqkv": _B_in["wqkv"],
        "B_w_phi": _B_in["w_phi"],
        "B_wo": _B_in["wo"],
    }

def reference(A_x, A_c_kv, A_w_q, A_w_uk, A_w_uv, A_w_o, B_x, B_wqkv, B_w_phi, B_wo):
    def _A_ref(x, c_kv, w_q, w_uk, w_uv, w_o):
        B, Sq, M = x.shape[0], x.shape[1], x.shape[2]
        Sk = c_kv.shape[1]
        H, D = w_q.shape[1], w_q.shape[2]
        q = torch.einsum("bqm,mhd->bhqd", x, w_q)
        k = torch.einsum("bkc,chd->bhkd", c_kv, w_uk)
        v = torch.einsum("bkc,chd->bhkd", c_kv, w_uv)
        scores = torch.einsum("bhqd,bhkd->bhqk", q, k) * (D ** -0.5)
        off = Sk - Sq
        qi = torch.arange(Sq)[:, None]
        kj = torch.arange(Sk)[None, :]
        cmask = kj <= (qi + off)
        scores = torch.where(cmask[None, None], scores, -1e9)
        p = _softmax(scores, axis=-1)
        ctx = torch.einsum("bhqk,bhkd->bhqd", p, v)
        return torch.einsum("bhqd,hdm->bqm", ctx, w_o)

    def _B_ref(x, wqkv, w_phi, wo):
        B, S, D = x.shape
        H = 16; Dh = D // H
        qkv = (lambda x, *d: x.permute(*d))((x @ wqkv).reshape(B, S, 3, H, Dh), 2, 0, 3, 1, 4)
        q, k, v = qkv[0], qkv[1], qkv[2]
        pq = torch.einsum("bhsd,hdf->bhsf", q, w_phi)
        pk = torch.einsum("bhsd,hdf->bhsf", k, w_phi)
        phi_q = torch.concatenate([_softmax(pq, axis=-1), _softmax(-pq, axis=-1)], axis=-1)
        phi_k = torch.concatenate([_softmax(pk, axis=-1), _softmax(-pk, axis=-1)], axis=-1)
        kv = torch.einsum("bhsf,bhsd->bhfd", phi_k, v)
        z  = torch.einsum("bhsf->bhf", phi_k)
        num = torch.einsum("bhqf,bhfd->bhqd", phi_q, kv)
        den = torch.einsum("bhqf,bhf->bhq", phi_q, z)[..., None] + 1e-6
        o = num / den
        return (lambda x, *d: x.permute(*d))(o, 0, 2, 1, 3).reshape(B, S, D) @ wo

    a = _A_ref(A_x, A_c_kv, A_w_q, A_w_uk, A_w_uv, A_w_o)
    b = _B_ref(B_x, B_wqkv, B_w_phi, B_wo)
    return torch.concatenate([a, b], axis=-1)
```

```python
from fw import *
WS_PHIQ = 112 << 20
WS_KVP = 120 << 20
WS_OF = 124 << 20
LOG2E = 1.4426950408889634

class B1:
    def __init__(s, V, sWave, sHead, sRb, sT, WS, SX, SW, SP, vL16, slots):
        s.sWave, s.sHead, s.sRb, s.sT, s.WS, s.SX, s.SW, s.SP, s.vL16 = sWave, sHead, sRb, sT, WS, SX, SW, SP, vL16
        s.slots = slots
        s.vXg = [V.get() for _ in range(4)]; s.vWg = [V.get() for _ in range(3)]
        s.vXr = [V.get() for _ in range(2)]; s.vWr = [V.get() for _ in range(2)]
        s.vXb = V.get(); s.vWb = [V.get() for _ in range(2)]
        s.t = V.get(16, 2)
        s.phi = [V.get(4) for _ in range(2)]
        s.acc = V.get(48)
        s.xf = [[V.get(4) for _ in range(2)] for _ in range(2)]
        s.wf = [V.get(4) for _ in range(8)]
        s.e = V.get(32)
        s.sel = [V.get(4) for _ in range(2)]

    def srds(s, px, pw, pp):
        T = s.sT; X, W, P = s.SX, s.SW, s.SP
        return [f"s_mul_i32 s{T}, s{s.sRb}, {128*896}", f"s_add_u32 s{X}, s{px}, s{T}", f"s_addc_u32 s{X+1}, s{px+1}, 0", f"s_mov_b32 s{X+2}, {128*896}", f"s_mov_b32 s{X+3}, 0x20000",
                f"s_mul_i32 s{T}, s{s.sHead}, 56", f"s_and_b32 s{T}, s{T}, 0xfffffff0", f"s_add_u32 s{W}, s{pw}, s{T}", f"s_addc_u32 s{W+1}, s{pw+1}, 0",
                f"s_sub_u32 s{W+2}, {448*2688}, s{T}", f"s_mov_b32 s{W+3}, 0x20000",
                f"s_mul_i32 s{T}, s{s.sHead}, 1568", f"s_add_u32 s{P}, s{pp}, s{T}", f"s_addc_u32 s{P+1}, s{pp+1}, 0", f"s_mov_b32 s{P+2}, 1568", f"s_mov_b32 s{P+3}, 0x20000"]

    def addr_dma(s):
        t = s.t; T = s.sT; L = s.vL16
        o = [f"v_lshrrev_b32 {t[1]}, 7, {L}", f"v_bfe_u32 {t[2]}, {L}, 4, 3", f"v_lshrrev_b32 {t[3]}, 8, {L}", f"v_xor_b32 {t[2]}, {t[2]}, {t[3]}",
             f"s_lshl_b32 s{T}, s{s.sWave}, 5", f"v_add_u32 {t[1]}, s{T}, {t[1]}", f"v_mul_u32_u24 {t[1]}, 896, {t[1]}"]
        for q in range(4):
            o += [f"v_xor_b32 {t[3]}, {4*(q % 2)}, {t[2]}", f"v_lshl_add_u32 {t[3]}, {t[3]}, 4, {t[1]}", f"v_add_u32 {s.vXg[q]}, {q*(8*896 - 1024)}, {t[3]}"]
        o += [f"v_lshrrev_b32 {t[1]}, 6, {L}", f"v_bfe_u32 {t[2]}, {L}, 4, 2", f"v_lshrrev_b32 {t[3]}, 9, {L}", f"v_lshlrev_b32 {t[3]}, 1, {t[3]}", f"v_xor_b32 {t[2]}, {t[2]}, {t[3]}",
              f"s_lshl_b32 s{T}, s{s.sWave}, 4", f"v_add_u32 {t[1]}, s{T}, {t[1]}", f"v_mul_u32_u24 {t[1]}, 2688, {t[1]}", f"v_lshl_add_u32 {s.vWg[0]}, {t[2]}, 4, {t[1]}",
              f"v_add_u32 {s.vWg[1]}, 896, {s.vWg[0]}", f"v_add_u32 {s.vWg[2]}, 1792, {s.vWg[0]}"]
        return o

    def addr_rd(s):
        t = s.t; T = s.sT; L = s.vL16
        o = [f"v_bfe_u32 {t[0]}, {L}, 4, 4", f"v_lshrrev_b32 {t[1]}, 8, {L}", f"v_lshrrev_b32 {t[2]}, 1, {t[0]}", f"v_xor_b32 {t[2]}, {t[2]}, {t[1]}",
             f"v_lshlrev_b32 {t[2]}, 4, {t[2]}", f"v_lshl_add_u32 {t[2]}, {t[0]}, 7, {t[2]}", f"s_lshl_b32 s{T}, s{s.sWave}, 12", f"v_add_u32 {s.vXb}, s{T}, {t[2]}"]
        o += [f"v_bfe_u32 {t[2]}, {L}, 6, 2", f"v_bfe_u32 {t[3]}, {L}, 4, 2", f"v_lshl_add_u32 {t[2]}, {t[1]}, 3, {t[2]}", f"v_lshlrev_b32 {t[2]}, 6, {t[2]}",
              f"v_and_b32 {t[4]}, 1, {t[1]}", f"v_lshlrev_b32 {t[4]}, 5, {t[4]}", f"s_and_b32 s{T}, s{s.sHead}, 1"]
        for b in range(2):
            o += [f"v_add_u32 {t[5]}, {4*b}, {t[3]}", f"v_min_u32 {t[5]}, 6, {t[5]}", f"v_add_lshl_u32 {t[5]}, {t[5]}, s{T}, 3", f"v_xor_b32 {t[5]}, {t[5]}, {t[4]}",
                  f"v_add_u32 {t[5]}, {t[5]}, {t[2]}", f"v_add_u32 {s.vWb[b]}, 16384, {t[5]}"]
        return o

    def phi_loads(s):
        t = s.t; L = s.vL16; P = f"s[{s.SP}:{s.SP+3}]"
        o = [f"v_bfe_u32 {t[0]}, {L}, 4, 4", f"v_lshrrev_b32 {t[1]}, 8, {L}", f"v_mul_u32_u24 {t[2]}, 224, {t[1]}", f"v_lshl_add_u32 {t[8]}, {t[0]}, 1, {t[2]}",
             f"v_cmp_gt_u32 vcc, 12, {t[0]}", f"v_add_u32 {t[3]}, 32, {t[8]}", "s_nop 0", f"v_cndmask_b32 {t[9]}, {t[8]}, {t[3]}, vcc"]
        for fb in range(2):
            for e in range(8):
                o.append(f"buffer_load_ushort {s.e[8*fb + e]}, {t[8+fb]}, {P}, 0 offen offset:{(16*(e//4) + e % 4)*56} ; @phi")
        return o

    def consts(s):
        t = s.t; L = s.vL16
        o = [f"v_bfe_u32 {t[0]}, {L}, 4, 4", f"v_lshrrev_b32 {t[1]}, 8, {L}", f"v_lshlrev_b32 {t[1]}, 2, {t[1]}", f"v_sub_u32 {t[2]}, {t[0]}, {t[1]}",
             f"v_mov_b32 {t[3]}, 0x3f80", f"v_mov_b32 {t[4]}, 0x3f800000"]
        for k in range(2):
            o += [f"v_cmp_eq_u32 vcc, {2*k}, {t[2]}", "s_nop 1", f"v_cndmask_b32 {t[5]}, 0, {t[3]}, vcc", f"v_cmp_eq_u32 vcc, {2*k+1}, {t[2]}", "s_nop 1",
                  f"v_cndmask_b32 {s.sel[0][k]}, {t[5]}, {t[4]}, vcc", f"v_mov_b32 {s.sel[1][2+k]}, {s.sel[0][k]}", f"v_mov_b32 {s.sel[0][2+k]}, 0", f"v_mov_b32 {s.sel[1][k]}, 0"]
        return o

    def dma(s, m):
        T = s.sT; base = s.slots[m % len(s.slots)]
        o = [f"s_lshl_b32 s{T}, s{s.sWave}, 12", f"s_add_u32 m0, s{T}, {base}", f"s_mov_b32 s{T+1}, {m*128}"]
        o += [f"buffer_load_dwordx4 {s.vXg[q]}, s[{s.SX}:{s.SX+3}], s{T+1} offen offset:{q*1024} lds ; @b{m}" for q in range(4)]
        o += [f"s_lshl_b32 s{T}, s{s.sWave}, 10", f"s_mov_b32 s{T+1}, {m*64*2688}"]
        for p in range(3):
            o += [f"s_add_u32 m0, s{T}, {base + 16384 + p*4096}", "s_nop 0", f"buffer_load_dwordx4 {s.vWg[p]}, s[{s.SW}:{s.SW+3}], s{T+1} offen lds ; @b{m}"]
        return o

    def A(s, part, rb, b):
        i = part*16 + (rb*8 + b*4 if part < 2 else b*8 + rb*4)
        return s.acc[i:i+4]

    def gemm(s):
        ns = len(s.slots)
        sp = []
        for st in range(14):
            for j in range(6):
                w = s.wf[(st*6 + j) % 8]
                for rb in range(2):
                    x = s.xf[st % 2][rb]; c = 0 if st == 0 else None
                    d = s.A(j//2, rb, j % 2)
                    sp.append(mfma(d, w, x, c) if j < 4 else mfma(d, x, w, c))
        G = Gaps(sp)
        def setaddr(m):
            base = s.slots[m % ns]
            return [f"v_add_u32 {s.vXr[0]}, {base}, {s.vXb}", f"v_xor_b32 {s.vXr[1]}, 64, {s.vXr[0]}", f"v_add_u32 {s.vWr[0]}, {base}, {s.vWb[0]}", f"v_add_u32 {s.vWr[1]}, {base}, {s.vWb[1]}"]
        def xr(st): return [f"ds_read_b128 {s.xf[st % 2][rb]}, {s.vXr[st % 2]} offset:{rb*2048}" for rb in range(2)]
        def wr(st, j): return [f"ds_read_b64_tr_b16 {s.wf[(st*6 + j) % 8][2*u:2*u+2]}, {s.vWr[j % 2]} offset:{(j//2)*4096 + (st % 2)*2048 + u*256}" for u in range(2)]
        pre = setaddr(0) + ["@VM b0", "s_barrier"] + xr(0) + flat([wr(0, j) for j in range(6)])
        for st in range(1, 14):
            z = 12*(st - 1)
            if st % 2 == 0:
                m = st//2
                G.at(z - 1, *setaddr(m)[:2]); G.at(z, f"@VM b{m}" + (" lgkmcnt(0)" if m - 1 + ns < 7 else ""), "s_barrier", *setaddr(m)[2:])
                if m - 1 + ns < 7: G.at(z + 1, *["@SEQ " + x for x in s.dma(m - 1 + ns)])
                G.at(z + 1, *wr(st, 0)); G.at(z + 2, *xr(st)); first = 1
            else:
                G.at(z, *wr(st, 0)); G.at(z + 1, *xr(st)); first = 1
            for j in range(first, 6): G.at(z + max(2*j - 1, 2 + j) if j < 5 else z + 9, *wr(st, j))
        body = [x[5:] if x.startswith("@SEQ ") else x for x in G.emit()]
        return pre, body

    def xl(s, op, rs):
        o = []
        for sw in ("v_permlane32_swap_b32", "v_permlane16_swap_b32"):
            o += [f"v_mov_b32 {s.t[i]}, {r}" for i, r in enumerate(rs)] + ["s_nop 1"]
            o += [f"{sw} {s.t[i]}, {r}" for i, r in enumerate(rs)] + [f"{op} {r}, {s.t[i]}, {r}" for i, r in enumerate(rs)]
        return o

    def feat(s, part):
        t = s.t; T = s.sT; o = []
        for rb in range(2):
            a = s.acc[part*16 + rb*8:part*16 + rb*8 + 8]
            o += [f"v_cvt_pk_bf16_f32 {s.xf[0][rb][k]}, {a[2*k]}, {a[2*k+1]}" for k in range(4)]
        o += ["s_nop 1"] + [mfma(s.A(part, rb, fb), s.phi[fb], s.xf[0][rb], 0) for rb in range(2) for fb in range(2)] + ["s_nop 7"]
        mx = [t[4], t[5], t[6], t[7]]
        for rb in range(2):
            a = s.acc[part*16 + rb*8:part*16 + rb*8 + 8]
            o += [f"v_mul_f32 {a[k]}, {f32(LOG2E)}, {a[k]}" for k in range(8)]
            for sg in range(2):
                n = "-" if sg else ""; r = mx[rb*2 + sg]
                o += [f"v_max3_f32 {r}, {n}{a[0]}, {n}{a[1]}, {n}{a[2]}", f"v_max3_f32 {r}, {n}{a[3]}, {n}{a[4]}, {r}", f"v_max3_f32 {r}, {n}{a[5]}, {n}{a[6]}, {r}", f"v_max_f32_e64 {r}, {n}{a[7]}, {r}"]
        o += s.xl("v_max_f32", mx)
        o += [f"v_cndmask_b32 {t[8+i]}, {mx[i]}, {t[12]}, s[{T+2}:{T+3}]" for i in range(4)]
        for i in range(4):
            a = s.acc[part*16 + (i//2)*8:part*16 + (i//2)*8 + 8]; e = s.e[8*i:8*i+8]; n = "-" if i % 2 else ""
            o += [f"v_sub_f32_e64 {e[k]}, {n}{a[k]}, {mx[i] if k < 4 else t[8+i]}" for k in range(8)]
            o += [f"v_exp_f32 {e[k]}, {e[k]}" for k in range(8)]
        for i in range(4):
            e = s.e[8*i:8*i+8]
            o += [f"v_pk_add_f32 {t[8:10]}, {e[0:2]}, {e[2:4]}", f"v_pk_add_f32 {t[10:12]}, {e[4:6]}, {e[6:8]}", f"v_pk_add_f32 {t[8:10]}, {t[8:10]}, {t[10:12]}", f"v_add_f32 {mx[i]}, {t[8]}, {t[9]}"]
        o += s.xl("v_add_f32", mx)
        o += [f"v_rcp_f32 {mx[i]}, {mx[i]}" for i in range(4)]
        for i in range(4):
            e = s.e[8*i:8*i+8]
            o += [f"v_mul_f32 {e[k]}, {mx[i]}, {e[k]}" for k in range(8)]
            o += [f"v_cvt_pk_bf16_f32 {e[k]}, {e[2*k]}, {e[2*k+1]}" for k in range(4)]
        return o

    def post(s, lds, mod):
        t = s.t; T = s.sT; L = s.vL16
        o = [f"v_cmp_le_u32 s[{T+2}:{T+3}], {t[13]}, {L}"]
        o = [f"v_mov_b32 {t[13]}, 768", f"v_mov_b32 {t[12]}, 0x7f800000"] + o + ["@VM phi"]
        o += [f"v_lshl_or_b32 {s.phi[fb][k]}, {s.e[8*fb + 2*k + 1]}, 16, {s.e[8*fb + 2*k]}" for fb in range(2) for k in range(4)]
        o += s.feat(0)
        o += [f"s_lshl_b32 s{T}, s{s.sRb}, 3", f"s_lshl_b32 s{T+1}, s{s.sWave}, 1", f"s_add_u32 s{T}, s{T}, s{T+1}", f"s_lshl_b32 s{T}, s{T}, 15",
              f"s_lshl_b32 s{T+1}, s{s.sHead}, 11", f"s_add_u32 s{T}, s{T}, s{T+1}", f"s_add_u32 s{T}, s{T}, {WS_PHIQ}", f"s_add_u32 s{T+1}, s{T}, 32768"]
        o += [f"buffer_store_dwordx4 {s.e[8*i:8*i+4]}, {L}, {s.WS}, s{T + i//2} offen offset:{(i % 2)*1024} {mod}".rstrip() for i in range(4)]
        o += s.feat(1)
        tr = s.acc[0:32]
        o += ["s_nop 1"] + [mfma(tr[(sg*2 + fb)*8 + rb*4:(sg*2 + fb)*8 + rb*4 + 4], s.e[(rb*2 + sg)*8:(rb*2 + sg)*8 + 4], s.sel[fb], 0) for sg in range(2) for fb in range(2) for rb in range(2)]
        vf = s.xf[1]
        for b in range(2):
            a = s.acc[32 + 8*b:40 + 8*b]
            o += [f"v_cvt_pk_bf16_f32 {vf[b][k]}, {a[2*k]}, {a[2*k+1]}" for k in range(4)]
        o += [f"v_bfe_u32 {t[0]}, {L}, 4, 4", f"v_cmp_eq_u32 vcc, 12, {t[0]}", f"v_mov_b32 {t[1]}, 0x3f803f80", "s_nop 0", f"v_cndmask_b32 {t[1]}, 0, {t[1]}, vcc", f"v_cmp_gt_u32 vcc, 12, {t[0]}", "s_nop 1"]
        o += [f"v_cndmask_b32 {vf[1][k]}, {t[1]}, {vf[1][k]}, vcc" for k in range(4)]
        for i in range(4):
            a = tr[8*i:8*i+8]
            o += [f"v_cvt_pk_bf16_f32 {a[k]}, {a[2*k]}, {a[2*k+1]}" for k in range(4)]
        kv = s.e
        o += ["s_nop 1"] + [mfma(kv[(sg*2 + b)*8 + fb*4:(sg*2 + b)*8 + fb*4 + 4], tr[(sg*2 + fb)*8:(sg*2 + fb)*8 + 4], vf[b], 0) for sg in range(2) for b in range(2) for fb in range(2)]
        o += [f"s_lshl_b32 s{T}, s{s.sWave}, 13", f"s_add_u32 s{T}, s{T}, {lds}", f"v_add_u32 {t[0]}, s{T}, {L}",
              f"s_lshl_b32 s{T}, s{s.sWave}, 11", f"s_add_u32 s{T}, s{T}, {lds}", f"v_add_u32 {t[1]}, s{T}, {L}", "s_nop 2"]
        o += [f"ds_write_b128 {t[0]}, {kv[4*i:4*i+4]} offset:{i*1024}" for i in range(8)]
        o += ["s_waitcnt lgkmcnt(0)", "s_barrier"]
        o += [f"ds_read_b128 {tr[8*w + 4*k:8*w + 4*k + 4]}, {t[1]} offset:{w*8192 + k*1024}" for w in range(4) for k in range(2)]
        o += [f"s_lshl_b32 s{T}, s{s.sHead}, 4", f"s_add_u32 s{T}, s{T}, s{s.sRb}", f"s_lshl_b32 s{T}, s{T}, 2", f"s_add_u32 s{T}, s{T}, s{s.sWave}", f"s_lshl_b32 s{T}, s{T}, 11", f"s_add_u32 s{T}, s{T}, {WS_KVP}"]
        o += ["s_waitcnt lgkmcnt(0)"]
        for w in range(1, 4):
            o += [f"v_pk_add_f32 {tr[2*k:2*k+2]}, {tr[2*k:2*k+2]}, {tr[8*w + 2*k:8*w + 2*k + 2]}" for k in range(4)]
        o += [f"buffer_store_dwordx4 {tr[4*k:4*k+4]}, {L}, {s.WS}, s{T} offen offset:{k*1024} {mod}".rstrip() for k in range(2)]
        return o
```

```python
import re

def vr(b, n=1, f="v"):
    return f"{f}{b}" if n == 1 else f"{f}[{b}:{b+n-1}]"
def ar(b, n=1): return vr(b, n, "a")
def sr(b, n=1): return vr(b, n, "s")

class R:
    def __init__(s, f, b, n=1): s.f, s.b, s.n = f, b, n
    def __str__(s): return vr(s.b, s.n, s.f)
    def __getitem__(s, i):
        if isinstance(i, slice):
            a = i.start or 0; e = s.n if i.stop is None else i.stop
            assert 0 <= a < e <= s.n
            return R(s.f, s.b + a, e - a)
        assert 0 <= i < s.n, (i, s.n)
        return R(s.f, s.b + i, 1)
    def sub(s, i, n): return s[i*n:(i+1)*n]

class Alloc:
    def __init__(s, f, lo, hi): s.f, s.p, s.hi = f, lo, hi
    def get(s, n=1, al=None):
        al = al or (4 if n >= 4 else (2 if n >= 2 else 1))
        s.p = (s.p + al - 1) // al * al
        r = R(s.f, s.p, n); s.p += n
        assert s.p <= s.hi, f"out of {s.f} regs"
        return r

def mfma(d, a, b, c=None):
    return f"v_mfma_f32_16x16x32_bf16 {d}, {a}, {b}, {d if c is None else c}"

def isvec(x):
    return x.split()[0].startswith(("v_", "ds_", "buffer_", "global_"))
def cost(x):
    op = x.split()[0]
    if op in ("v_exp_f32", "v_rcp_f32", "v_log_f32", "v_rsq_f32"): return 2
    return 1

class Gaps:
    def __init__(s, spine):
        s.spine = spine; s.n = len(spine); s.sc = [[] for _ in spine]; s.ve = [[] for _ in spine]; s.lock = set()
    def used(s, i): return sum(cost(x) for x in s.ve[i]) + max(0, len(s.sc[i]) - 1)
    def fits(s, i, x):
        if i in s.lock: return False
        if isvec(x): return s.used(i) + cost(x) <= 2
        return len(s.sc[i]) == 0 or s.used(i) + 1 <= 2
    def at(s, i, *xs):
        for x in xs: (s.ve if isvec(x) else s.sc)[i].append(x)
    def spread(s, items, lo, hi, strict=False, alone=False):
        n = len(items); prev = lo - 1; pos = []; pv = None
        for k, x in enumerate(items):
            first = prev + 1 if (strict or (pv is not None and isvec(pv) and not isvec(x))) else max(prev, lo)
            a = max(first, lo + (k * (hi - lo)) // n)
            b = max(a + 1, lo + ((k + 1) * (hi - lo)) // n)
            key = (lambda q: (s.used(q), q)) if isvec(x) else (lambda q: (len(s.sc[q]), q))
            c = [q for q in range(a, min(b, hi)) if s.fits(q, x)]
            if c: best = min(c, key=key)
            else:
                c = [q for q in range(first, hi) if s.fits(q, x)]
                c = [q for q in c if q < a + 6]
                if c: best = min(c, key=lambda q: abs(q - a))
                else:
                    a = min(a, hi - 1)
                    assert a >= first, f"no room for {x} in {lo}..{hi}"
                    best = min(range(a, max(a + 1, min(b, hi))), key=key)
            s.at(best, x)
            if alone: s.lock.add(best)
            prev = best; pos.append(best); pv = x
        return pos
    def emit(s, lo=0, hi=None):
        out = []
        for i in range(lo, s.n if hi is None else hi):
            out.append(s.spine[i]); out.extend(s.sc[i]); out.extend(s.ve[i])
        return out
    def fillers(s, lo, hi, pred=lambda x: True):
        return [x for i in range(lo, hi) for x in s.sc[i] + s.ve[i] if pred(x)]

def add_lgkm(body, pending=()):
    q = [parse(x)["dst"] for x in pending]
    out = []; lastm = -1; since = 0
    for x in body:
        I = parse(x)
        if I is None: out.append(x); continue
        if I["kind"] == "mfma":
            idx = max([i for i, d in enumerate(q) if d & I["src"]], default=-1)
            if idx >= 0:
                n = len(q) - 1 - idx
                if n >= since:
                    m = min(n - since, 15)
                    out.insert(lastm + 1, f"s_waitcnt lgkmcnt({m})")
                    q = q[len(q) - since - m:]
                else:
                    out.append(f"s_waitcnt lgkmcnt({n})"); q = q[len(q) - n:] if n else []
            out.append(x); lastm = len(out) - 1; since = 0
            continue
        if I["kind"] == "ds": q.append(I["dst"]); since += 1
        if I["kind"] == "wait" and I["lg"] is not None:
            q = q[len(q) - I["lg"]:] if I["lg"] and I["lg"] < len(q) else ([] if I["lg"] == 0 else q)
            since = min(since, len(q))
        out.append(x)
    return out

def gapstat(lines):
    bad = 0; cur = None; n = 0
    for x in lines + ["v_mfma_end"]:
        if x.startswith("v_mfma"):
            if cur is not None:
                t = 1
                for y in cur:
                    if isvec(y): t = max(t, 2) + cost(y)
                    else: t += 1
                if t > 4: bad += t - 4
            cur = []; n += 1
        elif cur is not None and not x.endswith(":") and not x.startswith("."): cur.append(x)
    return n - 1, bad

_RE = re.compile(r"^(-|abs\()?\|?([vas])(?:(\d+)|\[(\d+):(\d+)\])\)?\|?$")
def regs(tok):
    tok = tok.strip()
    if tok in ("vcc", "vcc_lo", "vcc_hi"): return {"vcc"}
    if tok == "m0": return {"m0"}
    if tok in ("exec", "exec_lo", "exec_hi"): return {"exec"}
    m = _RE.match(tok)
    if not m: return set()
    f = m.group(2)
    if m.group(3) is not None: return {f + m.group(3)}
    return {f + str(i) for i in range(int(m.group(4)), int(m.group(5)) + 1)}

TRANS = ("v_exp_f32", "v_log_f32", "v_rcp_f32", "v_rsq_f32", "v_sqrt_f32", "v_sin_f32", "v_cos_f32")
def parse(line):
    line = re.sub(r" (op_sel|op_sel_hi|neg_lo|neg_hi):\[[^\]]*\]", "", line.split(";")[0]).strip()
    if not line or line.endswith(":") or line.startswith("."): return None
    p = line.split(None, 1); op = p[0]; rest = p[1] if len(p) > 1 else ""
    ops = [o.strip() for o in rest.split(",")] if rest else []
    mods = ""
    if ops:
        last = ops[-1].split(None, 1); ops[-1] = last[0]; mods = last[1] if len(last) > 1 else ""
    I = dict(op=op, line=line, dst=set(), src=set(), kind="salu", ws=1, A=set(), C=set(), data=set())
    U = lambda xs: set().union(*[regs(x) for x in xs]) if xs else set()
    if op.startswith("v_mfma"):
        I.update(kind="mfma", dst=regs(ops[0]), A=regs(ops[1]) | regs(ops[2]), C=regs(ops[3]), passes=4 if "16x16x32" in op else 8)
        I["src"] = I["A"] | I["C"]; I["dtok"] = ops[0]; I["ctok"] = ops[3]
    elif op.startswith("ds_"):
        I["kind"] = "ds"
        if op.startswith(("ds_read", "ds_bpermute", "ds_permute", "ds_swizzle")): I.update(dst=regs(ops[0]), src=U(ops[1:]))
        else: I.update(src=U(ops))
    elif op.startswith(("buffer_", "global_")):
        I["kind"] = "vmem"
        if "lds" in mods.split() or op.startswith("global_load_lds"): I.update(src=U(ops) | {"m0"}, dma=True)
        elif "_load" in op: I.update(dst=regs(ops[0]), src=U(ops[1:]))
        elif op.startswith(("buffer_wbl2", "buffer_inv")): pass
        elif "_atomic" in op:
            I.update(src=U(ops))
            if "sc0" in mods.split(): I["dst"] = regs(ops[0])
        else:
            I.update(src=U(ops))
            if "x4" in op or "x3" in op: I["data"] = regs(ops[0] if op.startswith("buffer") else ops[1])
    elif op.startswith("v_"):
        I["kind"] = "valu"
        if op.startswith("v_permlane"): I.update(dst=U(ops[:2]), src=U(ops[:2]), perm=True)
        elif op == "v_nop": pass
        else:
            nd = 2 if ("_co_" in op or op.startswith(("v_div_scale", "v_mad_u64"))) else 1
            I.update(dst=U(ops[:nd]), src=U(ops[nd:]))
            if op.startswith(("v_fmac", "v_writelane", "v_pk_fmac", "v_dot2c")): I["src"] |= I["dst"]
            if op.startswith("v_cmpx"): I["dst"] |= {"exec"}
            if any(k in mods for k in ("row_", "quad_perm", "wave_")): I["dpp"] = True; I["src"] |= I["dst"]
        I["trans"] = op.replace("_e32", "").replace("_e64", "") in TRANS
    elif op == "s_nop": I["ws"] = int(ops[0], 0) + 1
    elif op == "s_waitcnt":
        I["kind"] = "wait"
        m = re.search(r"vmcnt\((\d+)\)", rest); I["vm"] = int(m.group(1)) if m else None
        m = re.search(r"lgkmcnt\((\d+)\)", rest); I["lg"] = int(m.group(1)) if m else None
    elif op.startswith(("s_load", "s_memtime", "s_memrealtime", "s_buffer_load")):
        I.update(kind="smem", dst=regs(ops[0]), src=U(ops[1:]))
    elif op.startswith(("s_cmp", "s_cbranch", "s_branch", "s_barrier", "s_endpgm", "s_setprio", "s_sleep", "s_bitcmp")): I["src"] = U(ops)
    else:
        I.update(dst=regs(ops[0]), src=U(ops[1:]))
        if "saveexec" in op: I["dst"] |= {"exec"}
    return I

def check(trace, name=""):
    P = []; t = 0; hist = []; lgq = []; vmq = []
    for line in trace:
        I = parse(line)
        if I is None: continue
        k = I["kind"]
        def need(n, J, why):
            d = t - J["t"] - 1
            if d < n: P.append(f"{name}: {why}: need {n} got {d}\n    {J['line']}\n    {I['line']}")
        for J in hist:
            jk = J["kind"]
            if jk == "valu":
                vd = {r for r in J["dst"] if r[0] in "va" and r != "vcc"}
                sd = J["dst"] - vd
                if k == "mfma" and vd & I["src"]: need(2, J, "valu->mfma")
                if k == "mfma" and "exec" in sd: need(4, J, "valu exec->mfma")
                if k == "valu":
                    if J.get("trans") and not I.get("trans") and vd & I["src"]: need(1, J, "trans->valu")
                    if I.get("perm") and vd & I["src"]: need(2, J, "valu->permlane")
                    if I.get("dpp") and vd & I["src"]: need(2, J, "valu->dpp")
                    if I["op"].startswith(("v_readfirstlane", "v_readlane")) and vd & I["src"]: need(1, J, "valu->readlane")
                    if sd & I["src"]: need(2, J, "valu sgpr->valu")
                if k == "vmem" and sd & I["src"]: need(5, J, "valu sgpr->vmem")
                if J.get("trans") and k in ("ds", "vmem") and vd & I["src"]: need(1, J, "trans->mem")
            if jk == "mfma":
                p = J["passes"]; far = {4: 8, 8: 12}[p]
                if k == "mfma":
                    if J["dst"] & I["A"]: need(far, J, "mfma D->mfma A/B")
                    if J["dst"] & I["C"] and J["dtok"] != I["ctok"]: need({4: 6, 8: 10}[p], J, "mfma D->mfma C overlap")
                    if J["dst"] & I["dst"] and J["dtok"] != I["ctok"]: need(far, J, "mfma D->mfma D (WAW)")
                elif k in ("valu", "ds", "vmem"):
                    if J["dst"] & (I["src"] | I["dst"]): need(far, J, "mfma D->use")
                    if k == "valu" and J["C"] & I["dst"]: need({4: 3, 8: 7}[p], J, "mfma C WAR")
            if jk == "vmem" and J["data"] & I["dst"] and k != "wait": need(2 if k == "valu" else 1, J, "store data WAR")
            if jk == "salu" and "m0" in J["dst"] and I.get("dma"): need(1, J, "m0->dma")
        touched = I["src"] | I["dst"]
        for q, nm in ((lgq, "lgkm"), (vmq, "vm")):
            for J in q:
                if J["dst"] & touched and not (J["kind"] == k == "ds" and not (J["dst"] & I["src"])):
                    P.append(f"{name}: {nm} pending result touched\n    {J['line']}\n    {I['line']}")
        if k == "wait":
            if I["lg"] is not None:
                if I["lg"] > 0 and any(J["kind"] == "smem" for J in lgq): P.append(f"{name}: counted lgkmcnt with smem pending: {line}")
                lgq[:] = lgq[len(lgq) - I["lg"]:] if I["lg"] < len(lgq) else lgq
                if I["lg"] == 0: lgq.clear()
            if I["vm"] is not None:
                vmq[:] = vmq[len(vmq) - I["vm"]:] if I["vm"] < len(vmq) else vmq
                if I["vm"] == 0: vmq.clear()
        if k in ("ds", "smem"): lgq.append(I)
        if k == "vmem":
            vmq.append(I)
            if len(vmq) > 63: P.append(f"{name}: more than 63 vmem outstanding at {line}")
        I["t"] = t + I["ws"] - 1
        t += I["ws"]
        hist.append(I)
        while hist and t - hist[0]["t"] > 22: hist.pop(0)
    return P

def kd(name, vgpr=512, acc=256, sgpr=96):
    return f""".p2align 6
.amdhsa_kernel {name}
  .amdhsa_next_free_vgpr {vgpr}
  .amdhsa_next_free_sgpr {sgpr}
  .amdhsa_accum_offset {acc}
  .amdhsa_group_segment_fixed_size 0
  .amdhsa_kernarg_size 104
  .amdhsa_user_sgpr_count 2
  .amdhsa_user_sgpr_kernarg_segment_ptr 1
  .amdhsa_system_sgpr_workgroup_id_x 1
  .amdhsa_float_denorm_mode_32 3
  .amdhsa_float_denorm_mode_16_64 3
.end_amdhsa_kernel"""

def flat(xs):
    out = []
    for x in xs:
        if isinstance(x, (list, tuple)): out.extend(flat(x))
        else: out.extend(x.split("\n"))
    return out

def fix_vm(lines):
    out = []; ops = []
    for x in lines:
        if x.startswith("@VM"):
            p = x.split(None, 2); tag = "@" + p[1]
            idx = max([i for i, y in enumerate(ops) if y.split(";")[-1].split() and tag in y.split(";")[-1].split()], default=None)
            assert idx is not None, x
            n = len(ops) - 1 - idx
            assert n <= 63
            out.append(f"s_waitcnt vmcnt({n})" + (" " + p[2] if len(p) > 2 else ""))
            continue
        if x.startswith(("buffer_", "global_")): ops.append(x)
        out.append(x)
    return out

import struct
def f32(x): return "0x%08x" % struct.unpack("<I", struct.pack("<f", x))[0]
```

```python
from fw import *
from b1 import B1

WS_KV = 0
WS_Q = 32 << 20
WS_STAMP = 200 << 20
QSCALE = 0x3db8aa3b

class K1:
    def __init__(s, stamps=False, store_mod="sc1"):
        s.stamps = stamps; s.store_mod = store_mod
        V = Alloc("v", 1, 256)
        s.vCg = [V.get() for _ in range(4)]
        s.vWg = [V.get() for _ in range(4)]
        s.vCb = V.get(); s.vC = V.get()
        s.vW = [V.get() for _ in range(8)]
        s.vSt = V.get()
        s.tmp = V.get(16)
        s.pk = [V.get(4) for _ in range(4)]
        s.t = [V.get() for _ in range(8)]
        s.cbuf = [[V.get(4) for _ in range(8)] for _ in range(2)]
        s.wbuf = [[V.get(4) for _ in range(8)] for _ in range(2)]
        s.acc = [[R("a", (kb*8+nb)*4, 4) for nb in range(8)] for kb in range(8)]
        s.nst = 0

    S_C, S_W, S_WS = 8, 12, 16
    sWave, sCk, sWk, sCm, sWm, sCrd, sCnt, sMt, sHead, sType, sWr, sWc, sT0, sT1, sCh, sSw, sCw = range(20, 37)
    sOut = 37; sRb = 38; sStamp = 40

    def stamp(s):
        if not s.stamps: return []
        r = s.sStamp + 2*s.nst; s.nst += 1
        return [f"s_memrealtime s[{r}:{r+1}]"]

    def dmaC(s, q): return f"buffer_load_dwordx4 {s.vCg[q]}, s[{s.S_C}:{s.S_C+3}], s{s.sCk} offen offset:{q*1024} lds"
    def dmaW(s, q): return f"buffer_load_dwordx4 {s.vWg[q]}, s[{s.S_W}:{s.S_W+3}], s{s.sWk} offen offset:{q*1024} lds"

    def c_voff(s, stride):
        t = s.t; o = []
        o += [f"v_and_b32 {t[0]}, 63, v0", f"v_lshrrev_b32 {t[1]}, 3, {t[0]}", f"v_and_b32 {t[2]}, 7, {t[0]}",
              f"v_lshrrev_b32 {t[3]}, 4, {t[0]}", f"v_xor_b32 {t[2]}, {t[2]}, {t[3]}",
              f"s_lshl_b32 s{s.sT0}, s{s.sWave}, 6", f"v_add_u32 {t[1]}, s{s.sT0}, {t[1]}",
              f"v_mul_u32_u24 {t[1]}, {stride}, {t[1]}"]
        for q in range(4):
            o += [f"v_xor_b32 {t[3]}, {4*(q%2)}, {t[2]}", f"v_lshl_add_u32 {t[3]}, {t[3]}, 4, {t[1]}",
                  f"v_add_u32 {s.vCg[q]}, {q*(8*stride-1024)}, {t[3]}"]
        return o

    def reads(s, par, woff):
        c = [f"ds_read_b128 {s.cbuf[par][kb]}, {s.vC} offset:{kb*2048}" for kb in range(8)]
        w = [[f"ds_read_b64_tr_b16 {s.wbuf[par][nb][2*u:2*u+2]}, {s.vW[nb]} offset:{woff + u*2048}" for u in range(2)] for nb in range(8)]
        return c, w

    def spine(s, par, typ, first):
        M = []
        for nb in range(8):
            for kk in range(8):
                kb = kk if nb % 2 == 0 else 7 - kk
                a, b = (s.wbuf[par][nb], s.cbuf[par][kb]) if typ == "K" else (s.cbuf[par][kb], s.wbuf[par][nb])
                M.append(mfma(s.acc[kb][nb], a, b, 0 if first else None))
        return M

    def adv_even(s):
        return [f"s_add_u32 s{s.sWk}, s{s.sWk}, {32*8192}", f"s_sub_u32 s{s.sCk}, s{s.sCk}, s{s.sCh}", f"s_add_u32 s{s.sCk}, s{s.sCk}, 128",
                f"s_add_u32 s{s.sCm}, s{s.sCm}, 32768", f"s_cmp_ge_u32 s{s.sCm}, 163840", f"s_cselect_b32 s{s.sCm}, s{s.sCw}, s{s.sCm}"]
    def adv_odd(s):
        return [f"s_add_u32 s{s.sWk}, s{s.sWk}, {32*8192}", f"s_add_u32 s{s.sCk}, s{s.sCk}, s{s.sCh}", f"s_xor_b32 s{s.sWm}, s{s.sWm}, 0x8000"]
    def dma_even(s):
        return [f"s_mov_b32 m0, s{s.sWm}"] + [s.dmaW(q) for q in range(4)] + [f"s_add_u32 m0, s{s.sCm}, 4096"] + [s.dmaC(q) for q in range(4)]
    def dma_odd(s):
        return [f"s_add_u32 m0, s{s.sWm}, 16384"] + [s.dmaW(q) for q in range(4)] + [f"s_mov_b32 m0, s{s.sCm}"] + [s.dmaC(q) for q in range(4)]

    def interval(s, par, typ, first=False, dma=True, vm=16, rd=True, tail=()):
        G = Gaps(s.spine(par, typ, first))
        if rd or dma:
            G.at(0, f"s_waitcnt vmcnt({vm})"); G.at(1, "s_barrier")
        if par == 0:
            pre = [f"v_xor_b32 {s.vC}, 64, {s.vC}"]; woff = 16384
        else:
            pre = [f"v_add_u32 {s.vC}, s{s.sCrd}, {s.vCb}"]; woff = 0
        if rd:
            G.at(0, *pre)
            c, w = s.reads(1 - par, woff)
            seq = []
            for i in range(8): seq += [w[i][0], w[i][1], c[i]]
            pos = G.spread(seq, 2, 52)
            if par == 0:
                for nb in range(8): G.at(min(63, pos[3*nb+1] + 1), f"v_xor_b32 {s.vW[nb]}, 0x8000, {s.vW[nb]}")
                G.spread([f"s_add_u32 s{s.sCrd}, s{s.sCrd}, 32768", f"s_cmp_ge_u32 s{s.sCrd}, 98304", f"s_cselect_b32 s{s.sCrd}, 0, s{s.sCrd}"], 3, 9, strict=True)
        if dma:
            d = s.dma_even() if par == 0 else s.dma_odd()
            G.spread(d, 10, 54, strict=True)
            G.spread(s.adv_even() if par == 0 else s.adv_odd(), 54, 61, strict=True)
        if tail: G.spread(list(tail), 61, 63, strict=True)
        if rd: G.at(63, "s_waitcnt lgkmcnt(0)")
        return G.emit()

    def prologue_dma(s):
        o = [f"s_mov_b32 m0, s{s.sCm}", "s_nop 0"] + [s.dmaC(q) for q in range(4)] + [f"s_add_u32 s{s.sCk}, s{s.sCk}, s{s.sCh}"]
        for i in range(2):
            d = s.dma_even(); o += [d[0], "s_nop 0"] + d[1:6] + ["s_nop 0"] + d[6:] + s.adv_even()
            d = s.dma_odd(); o += [d[0], "s_nop 0"] + d[1:6] + ["s_nop 0"] + d[6:] + s.adv_odd()
        return o

    def first_reads(s, vm):
        c, w = s.reads(0, 0)
        return [f"v_add_u32 {s.vC}, s{s.sCrd}, {s.vCb}", f"s_waitcnt vmcnt({vm})", "s_barrier"] + c + flat(w) + ["s_waitcnt lgkmcnt(0)"]

    def epilogue(s, typ):
        o = ["s_nop 7"]; n = 0
        S = f"s[{s.S_WS}:{s.S_WS+3}]"
        for x in range(8):
            if typ == "K": so = (x//2)*32768 + (x % 2)*8192
            elif typ == "Q": so = x*8192
            else: so = (x//2)*32768 + (x % 2)*4096
            o.append(f"s_add_u32 s{s.sT0}, s{s.sOut}, {so}")
            for y in range(4):
                if typ in "KQ": p, q = s.acc[x][2*y], s.acc[x][2*y+1]
                else: p, q = s.acc[2*(x//2)][4*(x % 2)+y], s.acc[2*(x//2)+1][4*(x % 2)+y]
                T = s.tmp[8*(n % 2):8*(n % 2)+8]; pk = s.pk[n % 4]; n += 1
                for r in range(4): o.append(f"v_accvgpr_read_b32 {T[r]}, {p[r]}")
                for r in range(4): o.append(f"v_accvgpr_read_b32 {T[4+r]}, {q[r]}")
                if typ == "Q":
                    for r in range(8): o.append(f"v_mul_f32 {T[r]}, s{s.sT1}, {T[r]}")
                for r in range(4): o.append(f"v_cvt_pk_bf16_f32 {pk[r]}, {T[2*r]}, {T[2*r+1]}")
                o.append(f"buffer_store_dwordx4 {pk}, {s.vSt}, {S}, s{s.sT0} offen offset:{y*1024} {s.store_mod}".rstrip())
        return o

    def gemm(s, typ, nbody, lab):
        mt = "K" if typ in "KQ" else "V"
        head = s.interval(0, mt, first=True) + s.interval(1, mt)
        cnt = [f"s_mov_b32 s{s.sCnt}, {nbody-3}"]
        loop = s.interval(0, mt) + s.interval(1, mt, tail=[f"s_sub_u32 s{s.sCnt}, s{s.sCnt}, 1", f"s_cmp_lg_u32 s{s.sCnt}, 0"])
        tail = (s.interval(0, mt, dma=False, vm=16) + s.interval(1, mt, dma=False, vm=8) +
                s.interval(0, mt, dma=False, vm=0) + s.interval(1, mt, dma=False, rd=False))
        code = head + cnt + [".p2align 5", f"{lab}:"] + loop + [f"s_cbranch_scc1 {lab}"] + tail
        trace = head + cnt + loop + loop + tail
        return code, trace

    def ring_reset(s):
        return [f"s_lshl_b32 s{s.sWm}, s{s.sWave}, 12", f"s_mov_b32 s{s.sCm}, s{s.sCw}", f"s_mov_b32 s{s.sCrd}, 0",
                f"s_mov_b32 s{s.sCk}, 0", f"s_mov_b32 s{s.sWk}, 0"]

    def build(s, name):
        t = s.t; o = []
        o += [f".globl {name}", ".p2align 8", f".type {name},@function", f"{name}:"]
        o += ["s_cmp_ge_u32 s2, 256", "s_cbranch_scc1 K1_END"]
        o += s.stamp()
        o += ["s_load_dwordx4 s[4:7], s[0:1], 0", "s_load_dwordx4 s[60:63], s[0:1], 16", "s_load_dwordx2 s[64:65], s[0:1], 32", "s_load_dwordx2 s[66:67], s[0:1], 96"]
        o += ["s_getpc_b64 s[68:69]", f"v_lshlrev_b32 {t[0]}, 7, v0", f"global_load_dword {t[7]}, {t[0]}, s[68:69]", f"v_add_u32 {t[0]}, 0x8000, {t[0]}", f"global_load_dword {t[6]}, {t[0]}, s[68:69]"]
        o += [f"v_lshrrev_b32 {t[0]}, 6, v0", "s_and_b32 s3, s2, 7", f"v_readfirstlane_b32 s{s.sWave}, {t[0]}",
              f"s_lshr_b32 s{s.sT0}, s2, 3", f"s_and_b32 s{s.sMt}, s{s.sT0}, 7", f"s_lshr_b32 s{s.sT0}, s{s.sT0}, 3",
              f"s_lshr_b32 s{s.sType}, s{s.sT0}, 1", f"s_and_b32 s{s.sT0}, s{s.sT0}, 1", f"s_lshl_b32 s{s.sHead}, s3, 1", f"s_add_u32 s{s.sHead}, s{s.sHead}, s{s.sT0}",
              f"s_lshr_b32 s{s.sWr}, s{s.sWave}, 1", f"s_and_b32 s{s.sWc}, s{s.sWave}, 1"]
        o += s.c_voff(2048)
        o += [f"v_and_b32 {t[0]}, 63, v0", f"v_lshrrev_b32 {t[1]}, 5, {t[0]}", f"v_and_b32 {t[2]}, 31, {t[0]}",
              f"v_lshlrev_b32 {t[3]}, 1, {t[1]}", f"v_xor_b32 {t[2]}, {t[2]}, {t[3]}",
              f"s_and_b32 s{s.sT0}, s{s.sWave}, 1", f"s_lshl_b32 s{s.sT0}, s{s.sT0}, 3", f"v_xor_b32 {t[2]}, s{s.sT0}, {t[2]}",
              f"s_lshl_b32 s{s.sT0}, s{s.sWave}, 3", f"v_add_u32 {t[1]}, s{s.sT0}, {t[1]}", f"v_lshlrev_b32 {t[1]}, 13, {t[1]}"]
        for q in range(4):
            o += [f"v_xor_b32 {t[3]}, {4*(q%2)}, {t[2]}", f"v_lshl_add_u32 {t[3]}, {t[3]}, 4, {t[1]}", f"v_add_u32 {s.vWg[q]}, {q*(16384-1024)}, {t[3]}"]
        o += [f"s_lshl_b32 s{s.sCw}, s{s.sWave}, 13", f"s_add_u32 s{s.sCw}, s{s.sCw}, 65536", f"s_mov_b32 s{s.sCh}, {32*2048}"]
        o += s.ring_reset()
        o += ["s_waitcnt lgkmcnt(0)"]
        o += [f"s_lshl_b32 s{s.sT0}, s{s.sMt}, 19", f"s_add_u32 s8, s6, s{s.sT0}", "s_addc_u32 s9, s7, 0", "s_mov_b32 s10, 0x80000", "s_mov_b32 s11, 0x20000"]
        o += [f"s_cmp_eq_u32 s{s.sType}, 0", "s_cselect_b32 s12, s62, s64", "s_cselect_b32 s13, s63, s65",
              f"s_lshl_b32 s{s.sT0}, s{s.sHead}, 9", f"s_add_u32 s12, s12, s{s.sT0}", "s_addc_u32 s13, s13, 0",
              f"s_sub_u32 s14, 0x800000, s{s.sT0}", "s_mov_b32 s15, 0x20000"]
        o += s.prologue_dma()
        o += ["s_mov_b32 s16, s66", "s_mov_b32 s17, s67", "s_mov_b32 s18, 0x10000000", "s_mov_b32 s19, 0x20000"]
        o += [f"v_and_b32 {t[0]}, 15, v0", f"v_bfe_u32 {t[1]}, v0, 4, 2", f"v_lshrrev_b32 {t[2]}, 1, {t[0]}", f"v_xor_b32 {t[2]}, {t[2]}, {t[1]}",
              f"v_lshlrev_b32 {t[2]}, 4, {t[2]}", f"v_lshl_add_u32 {t[2]}, {t[0]}, 7, {t[2]}",
              f"s_lshl_b32 s{s.sT0}, s{s.sWr}, 14", f"s_add_u32 s{s.sT0}, s{s.sT0}, 65536", f"v_add_u32 {s.vCb}, s{s.sT0}, {t[2]}"]
        o += [f"v_bfe_u32 {t[2]}, v0, 2, 2", f"v_and_b32 {t[3]}, 3, v0", f"v_and_b32 {t[4]}, 1, {t[1]}", f"v_lshl_or_b32 {t[4]}, {t[4]}, 2, {t[2]}",
              f"v_lshl_add_u32 {t[5]}, {t[1]}, 3, {t[2]}", f"v_lshlrev_b32 {t[5]}, 9, {t[5]}", f"v_lshl_add_u32 {t[5]}, {t[4]}, 5, {t[5]}",
              f"v_lshl_add_u32 {t[5]}, {t[3]}, 3, {t[5]}", f"s_lshl_b32 s{s.sT0}, s{s.sWc}, 8", f"v_add_u32 {t[5]}, s{s.sT0}, {t[5]}"]
        for nb in range(8): o.append(f"v_xor_b32 {s.vW[nb]}, {nb << 5}, {t[5]}")
        o += [f"v_and_b32 {t[0]}, 63, v0", f"v_lshlrev_b32 {s.vSt}, 4, {t[0]}"]
        o += [f"s_lshl_b32 s{s.sOut}, s{s.sHead}, 21", f"s_lshl_b32 s{s.sT0}, s{s.sMt}, 18", f"s_add_u32 s{s.sOut}, s{s.sOut}, s{s.sT0}",
              f"s_lshl_b32 s{s.sT0}, s{s.sWr}, 17", f"s_add_u32 s{s.sOut}, s{s.sOut}, s{s.sT0}"]
        o += s.first_reads(24)
        o += s.stamp()
        pre = list(o)
        o += [f"s_cmp_lg_u32 s{s.sType}, 0", "s_cbranch_scc1 K1_V"]
        n0 = s.nst
        ck, tk = s.gemm("K", 16, "K1_KL")
        k2 = s.stamp() + [f"s_lshl_b32 s{s.sT0}, s{s.sWc}, 12", f"s_add_u32 s{s.sOut}, s{s.sOut}, s{s.sT0}"]
        k2 += ["s_barrier"] + s.c_voff(896) + [f"s_mov_b32 s{s.sCh}, {32*896}"] + s.ring_reset()
        k2 += [f"s_mul_i32 s{s.sT0}, s{s.sMt}, {256*896}", f"s_add_u32 s8, s4, s{s.sT0}", "s_addc_u32 s9, s5, 0", f"s_mov_b32 s10, {256*896}",
               f"s_lshl_b32 s{s.sT0}, s{s.sHead}, 9", f"s_add_u32 s12, s60, s{s.sT0}", "s_addc_u32 s13, s61, 0", f"s_sub_u32 s14, {448*8192}, s{s.sT0}"]
        k2 += s.prologue_dma()[:]
        k2 += ["s_waitcnt vmcnt(24)"] + s.epilogue("K") + s.stamp()
        k2 += s.first_reads(32)
        cq, tq = s.gemm("Q", 7, "K1_QL")
        k3 = s.stamp() + [f"s_lshl_b32 s{s.sOut}, s{s.sHead}, 20", f"s_lshl_b32 s{s.sT0}, s{s.sMt}, 17", f"s_add_u32 s{s.sOut}, s{s.sOut}, s{s.sT0}",
              f"s_lshl_b32 s{s.sT0}, s{s.sWr}, 16", f"s_add_u32 s{s.sOut}, s{s.sOut}, s{s.sT0}",
              f"s_lshl_b32 s{s.sT0}, s{s.sWc}, 12", f"s_add_u32 s{s.sOut}, s{s.sOut}, s{s.sT0}", f"s_add_u32 s{s.sOut}, s{s.sOut}, {WS_Q}",
              f"s_mov_b32 s{s.sT1}, {QSCALE}"] + s.epilogue("Q")
        o += ck + k2 + cq + k3 + ["s_branch K1_FIN", "K1_V:"]
        nK = s.nst; s.nst = n0
        cv, tv = s.gemm("V", 16, "K1_VL")
        v2 = s.stamp() + [f"s_lshl_b32 s{s.sT0}, s{s.sWc}, 13", f"s_add_u32 s{s.sOut}, s{s.sOut}, s{s.sT0}", f"s_add_u32 s{s.sOut}, s{s.sOut}, 16384"] + s.epilogue("V") + s.stamp() + s.stamp()
        o += cv + v2 + ["K1_FIN:"]
        s.nst = nK
        B = B1(Alloc("v", 20, 256), s.sWave, s.sHead, s.sRb, 76, "s[16:19]", 8, 12, 72, s.vSt, [i*32768 for i in range(5)])
        bb = s.stamp() + ["s_load_dwordx4 s[56:59], s[0:1], 48", "s_load_dwordx2 s[70:71], s[0:1], 64", f"s_lshl_b32 s{s.sRb}, s{s.sMt}, 1", f"s_add_u32 s{s.sRb}, s{s.sRb}, s{s.sType}"]
        bb += B.addr_dma() + ["s_waitcnt vmcnt(10) lgkmcnt(0)"] + B.srds(56, 58, 70) + ["s_barrier"] + flat([B.dma(m) for m in range(5)]) + B.phi_loads() + B.addr_rd() + B.consts()
        bpre, bbody = B.gemm()
        n1 = len(bb) + len(bpre)
        bb = fix_vm(bb + bpre + bbody + B.post(65536, s.store_mod))
        n2 = n1 + len(bbody)
        bb = bb[:n1] + add_lgkm(bb[n1:n2], [x for x in bpre if x.startswith("ds_")]) + bb[n2:]
        o += bb
        if s.stamps:
            o += s.stamp() + ["s_waitcnt vmcnt(0)"] + s.stamp() + ["s_waitcnt lgkmcnt(0)"]
            for i in range(8): o.append(f"v_mov_b32 {s.tmp[i]}, s{s.sStamp + 2*min(i, s.nst-1)}")
            o += [f"s_lshl_b32 s{s.sT0}, s2, 7", f"s_lshl_b32 s{s.sT1}, s{s.sWave}, 5", f"s_add_u32 s{s.sT0}, s{s.sT0}, s{s.sT1}", f"s_add_u32 s{s.sT0}, s{s.sT0}, {WS_STAMP}",
                  f"v_mov_b32 {t[0]}, 0", f"buffer_store_dwordx4 {s.tmp[0:4]}, {t[0]}, s[16:19], s{s.sT0} offen", f"buffer_store_dwordx4 {s.tmp[4:8]}, {t[0]}, s[16:19], s{s.sT0} offen offset:16"]
        o += ["K1_END:", "s_endpgm"]
        P = []
        if not s.stamps:
            P = check(pre + tk + k2 + tq + k3 + bb, "K1-K") + check(pre + tv + v2 + bb, "K1-V")
        return o, P

if __name__ == "__main__":
    import sys
    for stamps, mod, path in ((False, "sc1", "k1.s"), (True, "sc1", "k1_st.s"), (True, "", "k1_st_plain.s")):
        k = K1(stamps, mod)
        o, P = k.build("k1_kernel")
        for p in P[:20]: print(p)
        txt = ["; @launch kernel=k1_kernel grid=(256,1,1) block=(256,1,1) lds=163840", '.amdgcn_target "amdgcn-amd-amdhsa--gfx950"', ".text"] + o
        txt += [".fill 8192, 4, 0xbf800000", "s_endpgm", '.section .rodata,"a"', kd("k1_kernel")]
        open(path, "w").write("\n".join(txt) + "\n")
```

```python
from fw import *
from k1 import WS_KV, WS_Q, WS_STAMP
from b1 import WS_PHIQ, WS_KVP, WS_OF

WS_PART = 64 << 20
WS_HO = 96 << 20
HO_STRIDE = 20480
SPLIT = 36
BIG = 2.0 ** 100
MOFF = 40.0
LEAD = 12
NPRE = 7
LDS_FLAG = 131072

class K2:
    sWave, sHead, sI, sType, sG0, sNb, sNpl, sItem, sMode, sA, sM, sCnt, sT0, sT1, sT2, sKV, sGc, sFb, sSig, sHo, sPart, sFlagOff, sFlagInc, sQ = range(20, 44)
    sStamp = 60
    WS = "s[8:11]"; WO = "s[12:15]"

    def __init__(s, stamps=False, store_mod="sc1"):
        s.stamps = stamps; s.store_mod = store_mod; s.nst = 0
        V = Alloc("v", 1, 256)
        s.vL16 = V.get(); s.vG = [V.get(), V.get()]; s.vRd = V.get(); s.vBase = V.get(); s.vRow = V.get()
        s.l = [V.get(), V.get()]; s.mx = [V.get(), V.get()]
        s.vWg = [V.get() for _ in range(4)]; s.vWo = [V.get() for _ in range(4)]
        s.t = V.get(16, 2)
        s.negm = [V.get(4), V.get(4)]
        s.CT = V.get(64)
        s.S = [[s.CT[16*p + 8*q:16*p + 8*q + 8] for q in range(2)] for p in range(2)]
        s.Cm = [[s.CT[32 + 8*q + 4*y:32 + 8*q + 4*y + 4] for y in range(2)] for q in range(2)]
        s.Oall = V.get(128)
        s.O = [[s.Oall[(q*16 + db)*4:(q*16 + db)*4 + 4] for q in range(2)] for db in range(16)]
        s.Q = [[R("a", (q*8 + t)*4, 4) for t in range(8)] for q in range(2)]
        s.F = [R("a", 64 + 4*i, 4) for i in range(16)]

    def stamp(s):
        if not s.stamps: return []
        r = s.sStamp + 2*s.nst; s.nst += 1
        return [f"s_memrealtime s[{r}:{r+1}]", "s_waitcnt lgkmcnt(0)"]

    def qk(s, p, masked):
        M = []
        for y in range(2):
            for t in range(8):
                for q in range(2):
                    d = s.S[p][q][4*y:4*y+4]
                    M.append(mfma(d, s.F[8*y + t], s.Q[q][t], (s.Cm[q][y] if masked else s.negm[q]) if t == 0 else None))
        return M
    def pv(s, p):
        return [mfma(s.O[db][q], s.F[db], s.S[p][q][0:4]) for db in range(16) for q in range(2)]
    def rd(s, f, base):
        off = base + (16384 + f*1024 if f < 16 else (f - 16)*1024)
        return f"ds_read_b128 {s.F[f % 16]}, {s.vRd} offset:{off}"
    def soft(s, p, q):
        S = s.S[p][q]; o = []
        for k in range(9):
            if k < 8: o.append(f"v_exp_f32 {S[k]}, {S[k]}")
            if k > 0:
                o.append(f"v_add_f32 {s.l[q]}, {S[k-1]}, {s.l[q]}")
                if k % 2 == 0: o.append(f"v_cvt_pk_bf16_f32 {S[k//2-1]}, {S[k-2]}, {S[k-1]}")
        return o
    def cm(s, y, dg, zero=False):
        o = []
        for q in range(2):
            for r in range(4):
                c = s.Cm[q][y][r]
                o += [f"v_add_f32 {c}, {f32((16*q - 16*y - r - 32*dg) * BIG)}, {s.vBase}", f"v_min_f32 {c}, {0 if zero else s.negm[q][0]}, {c}"]
        return o
    def batch(s):
        d = lambda i: f"buffer_load_dwordx4 {s.vG[i//4]}, {s.WS}, s{s.sA} offen offset:{(i % 4)*1024} lds"
        return ([f"s_mov_b32 m0, s{s.sM}"] + [d(i) for i in range(4)] + [f"s_add_u32 m0, s{s.sM}, 4096"] + [d(i) for i in range(4, 8)] +
                [f"s_add_u32 s{s.sA}, s{s.sA}, 32768", f"s_add_u32 s{s.sM}, s{s.sM}, 32768", f"s_and_b32 s{s.sM}, s{s.sM}, 0x1ffff"])
    def pre_reads(s): return [s.rd(f, 0) for f in range(NPRE)]

    def body(s, kind):
        masked = kind != "plain"; final = kind == "final"
        sp = s.qk(1, masked) + s.pv(0) + ([] if final else s.qk(0, masked)) + s.pv(1)
        G = Gaps(sp); n = len(sp)
        b1 = 64 - LEAD - 1
        G.at(b1 - 1, "s_waitcnt vmcnt(%d) lgkmcnt(0)" % (8 if final else 16)); G.at(b1, "s_barrier")
        if not final:
            G.at(b1 + 63, "s_waitcnt vmcnt(16) lgkmcnt(0)"); G.at(b1 + 64, "s_barrier")
            G.lock.add(127)
        def place_reads(fs, base, lo, hi, start):
            pos = G.spread([s.rd(f, base) for f in fs], lo, hi, strict=True)
            for f, p in zip(fs, pos):
                assert p >= start(f) - 31 and p <= start(f) - 7, (kind, f, p, start(f))
        place_reads(range(NPRE, 32), 0, 0, 40, lambda f: 2*f)
        if final:
            place_reads(range(16, 32), 32768, b1 + 1, b1 + 27, lambda f: 64 + 2*(f - 16))
            G.spread(s.soft(0, 1), 0, 24)
            G.spread(s.soft(1, 0) + s.soft(1, 1), 24, 62)
            G.spread(s.cm(1, 0), 0, 14)
        else:
            place_reads(range(32), 32768, b1 + 1, b1 + 53, lambda f: 64 + 2*f)
            G.at(b1 + 62, f"v_xor_b32 {s.vRd}, 0x10000, {s.vRd}")
            place_reads(range(NPRE), 0, b1 + 65, 127, lambda f: 128 + 2*f)
            G.spread(s.soft(0, 1), 0, 30); G.spread(s.soft(1, 0), 32, 64)
            G.spread(s.soft(1, 1), 64, 94); G.spread(s.soft(0, 0), 96, 127)
            G.spread(s.batch(), 1, b1 - 1, strict=True); G.spread(s.batch(), 65, b1 + 63, strict=True)
            if masked:
                G.spread(s.cm(1, 0), 0, 14); G.spread(s.cm(0, 1), 30, 62)
                G.spread(s.cm(1, 1), 62, 78); G.spread(s.cm(0, 2) + [f"v_add_f32 {s.vBase}, {f32(-64*BIG)}, {s.vBase}"], 94, 126)
            G.sc[127].append(f"s_sub_u32 s{s.sCnt}, s{s.sCnt}, 1")
        return add_lgkm(G.emit(), s.pre_reads())

    def set_base(s, sg):
        t = s.t
        return [f"s_lshl_b32 s{s.sT0}, s{s.sItem}, 7", f"s_lshl_b32 s{s.sT1}, {sg}, 5", f"s_sub_i32 s{s.sT0}, s{s.sT0}, s{s.sT1}",
                f"v_add_u32 {t[0]}, s{s.sT0}, {s.vRow}", f"v_cvt_f32_i32 {t[0]}, {t[0]}", f"v_add_f32 {t[0]}, 0.5, {t[0]}", f"v_mul_f32 {s.vBase}, {f32(BIG)}, {t[0]}"]

    def xlane(s, op, r):
        a = s.t[0]
        return [f"v_mov_b32 {a}, {r}", "s_nop 1", f"v_permlane32_swap_b32 {a}, {r}", f"{op} {r}, {a}, {r}",
                f"v_mov_b32 {a}, {r}", "s_nop 1", f"v_permlane16_swap_b32 {a}, {r}", f"{op} {r}, {a}, {r}"]

    def prologue(s):
        t = s.t
        a = ["PIECE:", f"s_mov_b32 s{s.sFb}, 0", f"s_mov_b32 s{s.sGc}, s{s.sG0}",
             f"s_lshl_b32 s{s.sT0}, s{s.sItem}, 16", f"s_add_u32 s{s.sT0}, s{s.sT0}, s{s.sQ}"]
        for i in range(16):
            if i and i % 4 == 0: a.append(f"s_add_u32 s{s.sT0}, s{s.sT0}, 4096")
            a.append(f"buffer_load_dwordx4 {s.Q[i//8][i % 8]}, {s.vL16}, {s.WS}, s{s.sT0} offen offset:{(i % 4)*1024}")
        r = ["REDO:", f"v_mov_b32 {s.mx[0]}, {f32(-2.0**90)}", f"v_mov_b32 {s.mx[1]}, {f32(-2.0**90)}"]
        b = ["PRO_LOOP:", f"s_lshl_b32 s{s.sT0}, s{s.sGc}, 15", f"s_add_u32 s{s.sT0}, s{s.sT0}, s{s.sKV}", f"s_lshl_b32 s{s.sT1}, s{s.sWave}, 12",
             f"s_add_u32 s{s.sA}, s{s.sT0}, 16384", f"s_add_u32 s{s.sT0}, s{s.sT0}, s{s.sT1}", f"s_add_u32 m0, s{s.sT1}, {3*32768 + 16384}", f"s_lshl_b32 s{s.sM}, s{s.sWave}, 13"]
        b += [f"buffer_load_dwordx4 {s.vL16}, {s.WS}, s{s.sT0} offen offset:{i*1024} lds" for i in range(4)]
        b += [f"s_cmp_lg_u32 s{s.sGc}, s{s.sG0}", "s_cbranch_scc1 PRO_SLOW"]
        fast = []
        for i in range(3):
            d = s.batch(); fast += [d[0], "s_nop 0"] + d[1:6] + ["s_nop 0"] + d[6:]
        fast += [f"v_mov_b32 {s.Oall[i]}, 0" for i in range(128)] + [f"v_mov_b32 {s.l[0]}, 0", f"v_mov_b32 {s.l[1]}, 0"]
        fast += ["s_waitcnt vmcnt(24)"]
        slow = ["PRO_SLOW:", "s_waitcnt vmcnt(0)"]
        c = ["PRO_JOIN:", f"v_add_u32 {s.vRd}, 0x10000, {s.vL16}", "s_barrier"] + [s.rd(f, 32768) for f in range(16)]
        c += s.set_base(f"s{s.sGc}") + s.cm(0, 0, True) + s.cm(1, 0, True)
        sig = [f"s_cmp_eq_u32 s{s.sSig}, 0", "s_cbranch_scc1 NOSIG", f"s_mov_b32 s{s.sSig}, 0", "s_mov_b64 exec, 1",
               f"v_mov_b32 {t[2]}, s{s.sFlagOff}", f"v_mov_b32 {t[3]}, s{s.sFlagInc}", f"global_atomic_add {t[2]}, {t[3]}, s[16:17] sc1", "s_mov_b64 exec, -1", "NOSIG:"]
        d = ["s_waitcnt lgkmcnt(0)"] + s.qk(0, True) + ["s_nop 7"]
        for q in range(2):
            S = s.S[0][q]
            d += [f"v_max3_f32 {s.mx[q]}, {S[2*k]}, {S[2*k+1]}, {s.mx[q]}" for k in range(4)]
        d += [f"s_cmp_eq_u32 s{s.sGc}, s{s.sG0}", "s_cbranch_scc1 PRO_DONE"]
        back = ["s_barrier", f"s_sub_u32 s{s.sGc}, s{s.sGc}, 1", "s_branch PRO_LOOP"]
        e = ["PRO_DONE:", f"v_mov_b32 {s.vRd}, {s.vL16}", "s_waitcnt vmcnt(16)", "s_barrier"] + s.pre_reads()
        for q in range(2):
            e += s.xlane("v_max_f32", s.mx[q]) + [f"v_sub_f32 {s.negm[q][0]}, {f32(-MOFF)}, {s.mx[q]}"]
            e += [f"v_mov_b32 {s.negm[q][r]}, {s.negm[q][0]}" for r in range(1, 4)]
            e += [f"v_add_f32 {s.S[0][q][k]}, {s.negm[q][0]}, {s.S[0][q][k]}" for k in range(8)]
        sf = s.soft(0, 0); e += sf[:-2] + ["s_nop 0"] + sf[-2:]
        code = a + r + b + fast + ["s_branch PRO_JOIN"] + slow + c + sig + d + back + e
        return code, a + r + b + fast + c + d + e

    def loops(s):
        pl, mk, fi = s.body("plain"), s.body("masked"), s.body("final")
        a = [f"s_sub_u32 s{s.sCnt}, s{s.sNpl}, 1", "s_cbranch_scc1 NOPLAIN"]
        b = ["NOPLAIN:", f"s_lshl_b32 s{s.sT2}, s{s.sNpl}, 1", f"s_add_u32 s{s.sT2}, s{s.sT2}, s{s.sG0}", f"s_add_u32 s{s.sT2}, s{s.sT2}, 1"]
        b += s.set_base(f"s{s.sT2}") + s.cm(0, 0)
        b += [f"s_sub_u32 s{s.sCnt}, s{s.sNb}, s{s.sNpl}", f"s_sub_u32 s{s.sCnt}, s{s.sCnt}, 2", "s_cbranch_scc1 FINAL"]
        code = a + [".p2align 5", "PLAIN:"] + pl + ["s_cbranch_scc0 PLAIN"] + b + ["MASKED:"] + mk + ["s_cbranch_scc0 MASKED", "FINAL:"] + fi
        s.stat = [gapstat(x) for x in (pl, mk, fi)]
        return code, a + pl + pl + b + mk + mk + fi

    def wo_batch(s, c):
        d = lambda i: f"buffer_load_dwordx4 {s.vWg[i % 4]}, {s.WO}, s{s.sT0 if i < 4 else s.sT1} offen offset:{(i % 4)*1024} lds ; @w{c}"
        return ([f"s_mov_b32 s{s.sT0}, {c*128}", f"s_add_u32 m0, s{s.sM}, {(c % 4)*32768}"] + [d(i) for i in range(4)] +
                [f"s_mov_b32 s{s.sT1}, {c*128 + 32*896}", f"s_add_u32 m0, s{s.sM}, {(c % 4)*32768 + 4096}"] + [d(i) for i in range(4, 8)])

    def pack(s, sc, merge):
        o = []; t = s.t
        for q in range(2):
            for k in range(32):
                O2 = s.Oall[q*64 + 2*k:q*64 + 2*k + 2]; c = s.CT[q*32 + k]
                o.append(f"v_pk_mul_f32 {O2}, {O2}, {sc[q]}")
                if merge:
                    u = t[12 + 2*(k % 2):14 + 2*(k % 2)]
                    o += [f"v_lshlrev_b32 {u[0]}, 16, {c}", f"v_and_b32 {u[1]}, 0xffff0000, {c}", f"v_pk_fma_f32 {O2}, {u}, {merge[q]}, {O2}"]
                o.append(f"v_cvt_pk_bf16_f32 {c}, {O2[0]}, {O2[1]}")
        return o

    def finish(s):
        t = s.t
        a = ["s_nop 7"] + s.xlane("v_add_f32", s.l[0]) + s.xlane("v_add_f32", s.l[1])
        a += [f"v_max_f32 {t[0]}, {s.l[0]}, {s.l[1]}", f"v_add_f32 {t[1]}, {s.l[0]}, {s.l[1]}", f"v_cmp_nge_f32 vcc, {f32(BIG)}, {t[1]}",
              f"s_lshl_b32 s{s.sT0}, s{s.sWave}, 2", f"s_add_u32 s{s.sT0}, s{s.sT0}, {LDS_FLAG}", "s_cmp_lg_u64 vcc, 0", f"s_cselect_b32 s{s.sT1}, 1, 0",
              f"v_mov_b32 {t[2]}, s{s.sT0}", f"v_mov_b32 {t[3]}, s{s.sT1}", f"ds_write_b32 {t[2]}, {t[3]}", f"v_mov_b32 {t[2]}, {LDS_FLAG}"]
        poll = [f"s_cmp_lg_u32 s{s.sMode}, 2", "s_cbranch_scc1 NOPOLL", f"v_mov_b32 {t[8]}, s{s.sFlagOff}",
                "POLL:", f"global_load_dword {t[9]}, {t[8]}, s[16:17] sc1", "s_waitcnt vmcnt(0)", f"v_readfirstlane_b32 s{s.sT0}, {t[9]}",
                f"s_lshl_b32 s{s.sT1}, s{s.sFlagInc}, 2", f"s_and_b32 s{s.sT0}, s{s.sT0}, s{s.sT1}", "s_cbranch_scc0 POLL", "NOPOLL:"]
        b = ["s_waitcnt vmcnt(0) lgkmcnt(0)", "s_barrier", f"ds_read_b128 {t[4:8]}, {t[2]}", "s_waitcnt lgkmcnt(0)",
             f"v_or3_b32 {t[4]}, {t[4]}, {t[5]}, {t[6]}", f"v_or_b32 {t[4]}, {t[4]}, {t[7]}", "s_nop 0", f"v_readfirstlane_b32 s{s.sT0}, {t[4]}",
             f"s_andn2_b32 s{s.sT0}, s{s.sT0}, s{s.sFb}", "s_cbranch_scc0 GOOD"]
        redo = [f"s_mov_b32 s{s.sFb}, 1", f"s_lshl_b32 s{s.sGc}, s{s.sNb}, 1", f"s_add_u32 s{s.sGc}, s{s.sGc}, s{s.sG0}", f"s_sub_u32 s{s.sGc}, s{s.sGc}, 1", "s_barrier", "s_branch REDO"]
        c = ["GOOD:"]
        for q in range(2):
            c += [f"v_max_f32 {t[0]}, {f32(2.0**-120)}, {s.l[q]}", f"v_rcp_f32 {t[4+2*q]}, {t[0]}", f"v_log_f32 {t[8+q]}, {s.l[q]}", "s_nop 0",
                  f"v_mov_b32 {t[5+2*q]}, {t[4+2*q]}", f"v_sub_f32 {t[8+q]}, {t[8+q]}, {s.negm[q][0]}"]
        c += [f"s_cmp_lg_u32 s{s.sMode}, 0", "s_cbranch_scc1 LAST"]
        sc = [t[4:6], t[6:8]]
        ho = s.pack(sc, None)
        ho += [f"v_lshrrev_b32 {t[0]}, 2, {s.vL16}", f"s_add_u32 s{s.sT0}, s{s.sHo}, 16384"]
        ho += [f"buffer_store_dword {t[8+q]}, {t[0]}, {s.WS}, s{s.sT0} offen offset:{q*256} sc1" for q in range(2)]
        for i in range(16):
            if i % 4 == 0: ho.append(f"s_add_u32 s{s.sT0}, s{s.sHo}, {i*1024}")
            ho.append(f"buffer_store_dwordx4 {s.CT[4*i:4*i+4]}, {s.vL16}, {s.WS}, s{s.sT0} offen offset:{(i % 4)*1024} sc1")
        ho += [f"s_mov_b32 s{s.sSig}, 1", "s_branch OWN"]
        d = ["LAST:", f"s_lshl_b32 s{s.sM}, s{s.sWave}, 13", f"s_cmp_lg_u32 s{s.sMode}, 2", "s_cbranch_scc1 NOMERGE"]
        wo = []
        for cc in range(3):
            w = s.wo_batch(cc); wo += w[:2] + ["s_nop 0"] + w[2:8] + ["s_nop 0"] + w[8:]
        mg = [f"v_lshrrev_b32 {t[0]}, 2, {s.vL16}", f"s_add_u32 s{s.sT0}, s{s.sHo}, 16384"]
        mg += [f"buffer_load_dword {t[10+q]}, {t[0]}, {s.WS}, s{s.sT0} offen offset:{q*256} sc1" for q in range(2)]
        for i in range(16):
            if i % 4 == 0: mg.append(f"s_add_u32 s{s.sT0}, s{s.sHo}, {i*1024}")
            mg.append(f"buffer_load_dwordx4 {s.CT[4*i:4*i+4]}, {s.vL16}, {s.WS}, s{s.sT0} offen offset:{(i % 4)*1024} sc1")
        mg += wo + ["s_waitcnt vmcnt(24)"]
        mw = [s.negm[0][0:2], s.negm[1][0:2]]
        for q in range(2):
            mg += [f"v_sub_f32 {t[0]}, {t[8+q]}, {t[10+q]}", f"v_exp_f32 {t[1]}, {t[0]}", f"v_exp_f32 {t[2]}, -{t[0]}", "s_nop 0",
                   f"v_add_f32 {t[1]}, 1.0, {t[1]}", f"v_add_f32 {t[2]}, 1.0, {t[2]}", f"v_rcp_f32 {mw[q][0]}, {t[1]}", f"v_rcp_f32 {t[2]}, {t[2]}", "s_nop 0",
                   f"v_mov_b32 {mw[q][1]}, {mw[q][0]}", f"v_mul_f32 {t[4+2*q]}, {t[2]}, {t[4+2*q]}", f"v_mov_b32 {t[5+2*q]}, {t[4+2*q]}"]
        mg += s.pack(sc, mw) + ["s_branch OPROJ"]
        nm = ["NOMERGE:"] + wo + s.pack(sc, None)
        code = a + poll + b + redo + c + ho + d + mg + nm
        s.wo_pro = wo
        return code, (a + b + c + ho, a + poll + b + c + d + mg, a + b + c + d + nm)

    def oproj(s):
        T = [[s.Oall[16*p + 8*q:16*p + 8*q + 8] for q in range(2)] for p in range(2)]
        ct = [[s.CT[q*32 + 4*t:q*32 + 4*t + 4] for t in range(8)] for q in range(2)]
        sp = []
        for c in range(7):
            for nb in range(4):
                for t in range(8):
                    for q in range(2):
                        d = T[nb//2][q][4*(nb % 2):4*(nb % 2)+4]
                        sp.append(mfma(d, s.F[(nb*8 + t) % 16], ct[q][t], 0 if t == 0 else None))
        G = Gaps(sp)
        def rd(c, f, u): return f"ds_read_b64_tr_b16 {s.F[f % 16][2*u:2*u+2]}, {s.vWo[f//8]} offset:{(c % 2)*32768 + (f % 8)*4096 + u*2048}"
        def out(c, p):
            o = [f"s_add_u32 s{s.sT2}, s{s.sPart}, {(2*c + p)*16384}"]
            for q in range(2):
                S = T[p][q]
                o += [f"v_cvt_pk_bf16_f32 {S[k]}, {S[2*k]}, {S[2*k+1]}" for k in range(4)]
                if q: o.append(f"s_add_u32 s{s.sT2}, s{s.sT2}, {14*16384}")
                o.append(f"buffer_store_dwordx4 {S[0:4]}, {s.vL16}, {s.WS}, s{s.sT2} offen {s.store_mod}".rstrip())
            return o
        allr = lambda c: [rd(c, f, u) for f in range(32) for u in range(2)]
        pre = ["@VM w0", "s_barrier"] + allr(0)[:2*NPRE]
        for c in range(7):
            z = 64*c; b1 = z + 64 - LEAD - 1
            if c == 0: rs, lo, f0 = allr(0)[2*NPRE:], 0, 2*NPRE
            else: rs, lo, f0 = allr(c), z - LEAD, 0
            pos = G.spread(rs, lo, z + 41)
            for k, p in enumerate(pos):
                f = (k + f0)//2
                assert z + 2*f - 31 <= p <= z + 2*f - 7, (c, f, p)
            if c < 6:
                G.at(b1 - 1, f"@VM w{c+1} lgkmcnt(0)"); G.at(b1, "s_barrier")
                if c % 2 == 1: G.spread([f"v_xor_b32 {s.vWo[nb]}, 0x10000, {s.vWo[nb]}" for nb in range(4)], z + 42, b1)
        for c in range(7):
            z = 64*c
            if c > 0: G.spread(out(c - 1, 1), z + 4, z + 29, strict=True)
            G.spread(out(c, 0), z + 37, z + 61, strict=True)
            if c + 3 < 7: G.spread(s.wo_batch(c + 3), z + 1, z + 49, strict=True)
        post = ["s_nop 7"] + out(6, 1)
        n0 = len(s.wo_pro)
        body = fix_vm(s.wo_pro + pre + G.emit() + post)[n0:]
        k = len(pre)
        body = body[:k] + add_lgkm(body[k:], body[2:k])
        s.stat.append(gapstat(body))
        return ["OPROJ:"] + body

    def bo(s):
        t = s.t; L = s.vL16; O = s.Oall; T0, T1 = s.sT0, s.sT1
        o = [f"s_lshl_b32 s{T0}, s{s.sHead}, 17", f"s_lshl_b32 s{T1}, s{s.sWave}, 11", f"s_add_u32 s{T0}, s{T0}, s{T1}", f"s_add_u32 s{T0}, s{T0}, {WS_KVP}"]
        for rb in range(16):
            o += [f"buffer_load_dwordx4 {O[8*rb + 4*k:8*rb + 4*k + 4]}, {L}, {s.WS}, s{T0} offen offset:{k*1024} ; @p{rb}" for k in range(2)] + [f"s_add_u32 s{T0}, s{T0}, 8192"]
        o += [f"s_lshl_b32 s{T0}, s{s.sWave}, 20", f"s_lshl_b32 s{T1}, s{s.sHead}, 11", f"s_add_u32 s{T0}, s{T0}, s{T1}", f"s_add_u32 s{T0}, s{T0}, {WS_PHIQ}"]
        ph = lambda i, sg: R("a", (2*i + sg)*4, 4)
        ld = lambda i: [f"buffer_load_dwordx4 {ph(i, sg)}, {L}, {s.WS}, s{T0} offen offset:{sg*1024} ; @f{i}" for sg in range(2)] + [f"s_add_u32 s{T0}, s{T0}, 32768"]
        for i in range(14): o += ld(i)
        for rb in range(1, 16):
            o += [f"@VM p{rb}"] + [f"v_pk_add_f32 {O[2*k:2*k+2]}, {O[2*k:2*k+2]}, {O[8*rb + 2*k:8*rb + 2*k + 2]}" for k in range(4)]
        o += [f"v_cvt_pk_bf16_f32 {O[k]}, {O[2*k]}, {O[2*k+1]}" for k in range(4)]
        o += [f"s_lshl_b32 s{T1}, s{s.sWave}, 10", f"v_add_u32 {t[0]}, s{T1}, {L}", f"ds_write_b128 {t[0]}, {O[0:4]}"]
        for i in range(14, 28): o += ld(i)
        kv = [[s.CT[(sg*3 + b)*4:(sg*3 + b)*4 + 4] for b in range(3)] for sg in range(2)]
        o += [f"v_and_b32 {t[1]}, 0x300, {L}", f"v_bfe_u32 {t[2]}, {L}, 4, 4", f"v_cmp_gt_u32 vcc, 12, {t[2]}", "s_waitcnt lgkmcnt(0)", "s_barrier"]
        for sg in range(2):
            o += [f"ds_read_b128 {kv[sg][b]}, {L} offset:{(sg*2 + b)*1024}" for b in range(2)] + [f"ds_read_b128 {kv[sg][2]}, {t[1]} offset:{(sg*2 + 1)*1024 + 192}"]
        o += [f"s_lshl_b32 s{s.sT2}, s{s.sWave}, 19", f"s_lshl_b32 s{T1}, s{s.sHead}, 10", f"s_add_u32 s{s.sT2}, s{s.sT2}, s{T1}", f"s_add_u32 s{s.sT2}, s{s.sT2}, {WS_OF}", "s_waitcnt lgkmcnt(0)"]
        o += [f"v_cndmask_b32 {kv[sg][1][k]}, 0, {kv[sg][1][k]}, vcc" for sg in range(2) for k in range(4)]
        o += ["@VM f0", "s_barrier"]
        D = lambda i: O[(i % 4)*12:(i % 4)*12 + 12]
        sp = [mfma(D(i)[4*((b + 2) % 3):4*((b + 2) % 3) + 4], kv[sg][(b + 2) % 3], ph(i, sg), 0 if sg == 0 else None) for i in range(32) for sg in range(2) for b in range(3)]
        G = Gaps(sp)
        def fin(i):
            d = D(i)
            return ([f"v_add_f32 {d[8]}, {f32(1e-6)}, {d[8]}", f"v_rcp_f32 {d[8]}, {d[8]}"] + [f"v_pk_mul_f32 {d[2*k:2*k+2]}, {d[2*k:2*k+2]}, {d[8:10]} op_sel_hi:[1,0]" for k in range(4)] +
                    [f"v_cvt_pk_bf16_f32 {d[k]}, {d[2*k]}, {d[2*k+1]}" for k in range(4)] + [f"buffer_store_dwordx4 {d[0:4]}, {L}, {s.WS}, s{s.sT2} offen {s.store_mod}".rstrip()])
        for i in range(32):
            z = 6*i
            if i < 31: G.at(z + 5, f"@VM f{i+1}")
            if 4 <= i < 8: G.at(z, *["@SEQ " + x for x in ld(i + 24)])
            if i >= 2:
                f = fin(i - 2)
                G.at(z, f[0]); G.at(z + 1, f[1]); G.at(z + 2, f[2], f[3]); G.at(z + 3, f[4], f[5]); G.at(z + 4, f[6], f[7]); G.at(z + 5, f[8], f[9], f[10])
                if i > 2: G.at(z + 1, f"s_add_u32 s{s.sT2}, s{s.sT2}, 16384")
        o += [x[5:] if x.startswith("@SEQ ") else x for x in G.emit()]
        for i in (30, 31):
            f = fin(i); o += [f"s_add_u32 s{s.sT2}, s{s.sT2}, 16384"] + f[:2] + ["s_nop 0"] + f[2:]
        o += ["s_waitcnt vmcnt(16)"]
        return fix_vm(o)

    def build(s, name):
        t = s.t; o = []
        o += [f".globl {name}", ".p2align 8", f".type {name},@function", f"{name}:"]
        o += ["s_cmp_ge_u32 s2, 256", "s_cbranch_scc1 K2_END"]
        o += s.stamp()
        o += ["s_load_dwordx2 s[4:5], s[0:1], 40", "s_load_dwordx4 s[16:19], s[0:1], 88"]
        o += ["s_getpc_b64 s[6:7]", f"v_lshlrev_b32 {t[0]}, 7, v0", f"global_load_dword {t[15]}, {t[0]}, s[6:7]"]
        o += [f"v_lshrrev_b32 {t[0]}, 6, v0", "s_and_b32 s3, s2, 7", f"v_readfirstlane_b32 s{s.sWave}, {t[0]}",
              f"s_lshr_b32 s{s.sT0}, s2, 3", f"s_and_b32 s{s.sT1}, s{s.sT0}, 1", f"s_lshl_b32 s{s.sHead}, s3, 1", f"s_add_u32 s{s.sHead}, s{s.sHead}, s{s.sT1}",
              f"s_bfe_u32 s{s.sType}, s{s.sT0}, 0x10001", f"s_lshr_b32 s{s.sI}, s{s.sT0}, 2"]
        o += [f"v_and_b32 {t[0]}, 63, v0", f"v_lshlrev_b32 {s.vL16}, 4, {t[0]}", f"s_lshl_b32 s{s.sT0}, s{s.sWave}, 13",
              f"v_add_u32 {s.vG[0]}, s{s.sT0}, {s.vL16}", f"v_add_u32 {s.vG[1]}, 4096, {s.vG[0]}",
              f"v_and_b32 {t[1]}, 15, v0", f"v_bfe_u32 {t[2]}, v0, 4, 2", f"v_lshlrev_b32 {t[3]}, 2, {t[2]}", f"v_sub_u32 {t[1]}, {t[1]}, {t[3]}",
              f"s_lshl_b32 s{s.sT0}, s{s.sWave}, 5", f"v_add_u32 {s.vRow}, s{s.sT0}, {t[1]}"]
        o += [f"s_lshl_b32 s{s.sKV}, s{s.sHead}, 21", f"s_lshl_b32 s{s.sQ}, s{s.sHead}, 20", f"s_lshl_b32 s{s.sT0}, s{s.sWave}, 14",
              f"s_add_u32 s{s.sQ}, s{s.sQ}, s{s.sT0}", f"s_add_u32 s{s.sQ}, s{s.sQ}, {WS_Q}",
              f"s_lshl_b32 s{s.sT0}, s{s.sHead}, 3", f"s_add_u32 s{s.sT0}, s{s.sT0}, s{s.sI}",
              f"s_lshr_b32 s{s.sFlagOff}, s{s.sT0}, 1", f"s_lshl_b32 s{s.sFlagOff}, s{s.sFlagOff}, 2",
              f"s_and_b32 s{s.sT1}, s{s.sT0}, 1", f"s_lshl_b32 s{s.sT1}, s{s.sT1}, 4", f"s_lshl_b32 s{s.sFlagInc}, 1, s{s.sT1}",
              f"s_lshl_b32 s{s.sT0}, s{s.sT0}, 2", f"s_add_u32 s{s.sT0}, s{s.sT0}, s{s.sWave}", f"s_mul_i32 s{s.sHo}, s{s.sT0}, {HO_STRIDE}", f"s_add_u32 s{s.sHo}, s{s.sHo}, {WS_HO}",
              f"s_mov_b32 s{s.sSig}, 0"]
        o += [f"v_lshrrev_b32 {t[3]}, 3, {t[0]}", f"s_lshl_b32 s{s.sT0}, s{s.sWave}, 6", f"v_add_u32 {t[3]}, s{s.sT0}, {t[3]}", f"v_mul_u32_u24 {t[3]}, 896, {t[3]}",
              f"v_and_b32 {t[4]}, 7, v0", f"v_lshlrev_b32 {t[5]}, 1, {t[2]}", f"v_xor_b32 {t[4]}, {t[4]}, {t[5]}", f"v_lshl_add_u32 {s.vWg[0]}, {t[4]}, 4, {t[3]}"]
        o += [f"v_add_u32 {s.vWg[q]}, {q*(8*896 - 1024)}, {s.vWg[0]}" for q in range(1, 4)]
        o += [f"v_bfe_u32 {t[3]}, v0, 2, 4", f"v_bfe_u32 {t[4]}, v0, 3, 2", f"v_and_b32 {t[5]}, 3, v0",
              f"v_lshlrev_b32 {t[3]}, 7, {t[3]}", f"v_lshl_add_u32 {t[3]}, {t[4]}, 5, {t[3]}", f"v_lshl_add_u32 {s.vWo[0]}, {t[5]}, 3, {t[3]}"]
        o += [f"v_xor_b32 {s.vWo[nb]}, {nb << 5}, {s.vWo[0]}" for nb in range(1, 4)]
        o += ["s_waitcnt lgkmcnt(0)", "s_mov_b32 s8, s18", "s_mov_b32 s9, s19", "s_mov_b32 s10, 0x10000000", "s_mov_b32 s11, 0x20000",
              f"s_mul_i32 s{s.sT0}, s{s.sHead}, 229376", f"s_add_u32 s12, s4, s{s.sT0}", "s_addc_u32 s13, s5, 0", "s_mov_b32 s14, 229376", "s_mov_b32 s15, 0x20000"]
        pre = list(o)
        o += [f"s_sub_u32 s{s.sItem}, 15, s{s.sI}", f"s_lshl_b32 s{s.sT0}, s{s.sItem}, 1", f"s_add_u32 s{s.sT0}, s{s.sT0}, 2",
              f"s_cmp_eq_u32 s{s.sType}, 0", "s_cbranch_scc1 BTYPE",
              f"s_mov_b32 s{s.sG0}, 0", f"s_min_u32 s{s.sNb}, s{s.sT0}, {SPLIT//2}", f"s_cmp_gt_u32 s{s.sT0}, {SPLIT//2}", f"s_cselect_b32 s{s.sMode}, 2, 1", "s_branch PARAM",
              "BTYPE:", f"s_mov_b32 s{s.sG0}, {SPLIT}", f"s_mov_b32 s{s.sMode}, 0", f"s_sub_u32 s{s.sNb}, s{s.sT0}, {SPLIT//2}", f"s_cmp_gt_u32 s{s.sT0}, {SPLIT//2}", "s_cbranch_scc1 PARAM", "s_branch BO",
              "OWN:", f"s_mov_b32 s{s.sItem}, s{s.sI}", f"s_mov_b32 s{s.sG0}, 0", f"s_mov_b32 s{s.sMode}, 1", f"s_lshl_b32 s{s.sNb}, s{s.sI}, 1", f"s_add_u32 s{s.sNb}, s{s.sNb}, 2",
              "PARAM:", f"s_lshl_b32 s{s.sT0}, s{s.sItem}, 1", f"s_lshr_b32 s{s.sT1}, s{s.sG0}, 1", f"s_sub_i32 s{s.sT0}, s{s.sT0}, s{s.sT1}", f"s_sub_i32 s{s.sT0}, s{s.sT0}, 1",
              f"s_max_i32 s{s.sT0}, s{s.sT0}, 0", f"s_sub_u32 s{s.sT1}, s{s.sNb}, 1", f"s_min_u32 s{s.sNpl}, s{s.sT0}, s{s.sT1}",
              f"s_lshl_b32 s{s.sT0}, s{s.sItem}, 3", f"s_lshl_b32 s{s.sT1}, s{s.sWave}, 1", f"s_add_u32 s{s.sT0}, s{s.sT0}, s{s.sT1}", f"s_mul_i32 s{s.sPart}, s{s.sT0}, {14*16384}",
              f"s_lshl_b32 s{s.sT0}, s{s.sHead}, 10", f"s_add_u32 s{s.sPart}, s{s.sPart}, s{s.sT0}", f"s_add_u32 s{s.sPart}, s{s.sPart}, {WS_PART}"]
        pc, pt = s.prologue(); lc, lt = s.loops(); fc, ft = s.finish(); oc = s.oproj()
        o += s.stamp() + pc + s.stamp() + lc + s.stamp() + fc + oc[:1] + s.stamp() + oc[1:]
        if s.stamps:
            o += s.stamp() + ["s_waitcnt vmcnt(0)"] + s.stamp()
            for i in range(8): o.append(f"v_mov_b32 {t[i]}, s{s.sStamp + 2*min(i, s.nst-1)}")
            o += [f"s_lshl_b32 s{s.sT0}, s2, 7", f"s_lshl_b32 s{s.sT1}, s{s.sWave}, 5", f"s_add_u32 s{s.sT0}, s{s.sT0}, s{s.sT1}", f"s_add_u32 s{s.sT0}, s{s.sT0}, {WS_STAMP + 65536}",
                  f"v_mov_b32 {t[8]}, 0", f"buffer_store_dwordx4 {t[0:4]}, {t[8]}, {s.WS}, s{s.sT0} offen", f"buffer_store_dwordx4 {t[4:8]}, {t[8]}, {s.WS}, s{s.sT0} offen offset:16"]
        bo = s.bo()
        o += ["K2_END:", "s_endpgm", "BO:"] + bo + ["s_branch OWN"]
        P = check(pre + pt + lt + ft[0] + pt + lt + ft[2] + oc, "K2-B") + check(pre + pt + lt + ft[1] + oc, "K2-A") + check(pre + bo + pt, "K2-BO")
        return o, P

if __name__ == "__main__":
    k = K2(); o, P = k.build("k2_kernel")
    for p in P[:20]: print(p)
    print(len(P), "problems; gap overflow", k.stat)
    open("k2_only.s", "w").write("\n".join(['.amdgcn_target "amdgcn-amd-amdhsa--gfx950"', ".text"] + o) + "\n")
```

```python
from fw import *
from k1 import WS_STAMP
from k2 import WS_PART
from b1 import WS_OF

class K3:
    NWG = 224
    def __init__(s, stamps=False): s.stamps = stamps
    def build(s, name):
        o = [f".globl {name}", ".p2align 8", f".type {name},@function", f"{name}:"]
        o += [f"s_cmp_ge_u32 s2, {s.NWG}", "s_cbranch_scc1 K3_END"]
        if s.stamps: o += ["s_memrealtime s[40:41]"]
        o += ["s_load_dwordx4 s[4:7], s[0:1], 72", "s_load_dwordx2 s[8:9], s[0:1], 96",
              "s_getpc_b64 s[36:37]", "v_and_b32 v2, 63, v0", "v_lshlrev_b32 v1, 6, v2", "global_load_dword v15, v1, s[36:37]",
              "v_lshrrev_b32 v1, 6, v0", "v_lshlrev_b32 v3, 4, v2", "v_readfirstlane_b32 s20, v1",
              "s_lshl_b32 s21, s2, 3", "s_add_u32 s21, s21, s20", "s_lshl_b32 s22, s21, 14", f"s_add_u32 s22, s22, {WS_PART}",
              "s_lshr_b32 s25, s2, 3", f"s_mul_hi_u32 s26, s25, {(2**32 + 6)//7}", "s_mul_i32 s27, s26, 7", "s_sub_u32 s27, s25, s27",
              "s_and_b32 s25, s2, 7", "s_lshl_b32 s25, s25, 2", "s_add_u32 s26, s26, s25"]
        o += ["v_lshrrev_b32 v4, 3, v2", "s_lshl_b32 s25, s20, 6", "v_add_u32 v4, s25, v4", "v_mul_u32_u24 v4, 896, v4",
              "v_and_b32 v5, 7, v2", "v_lshrrev_b32 v6, 4, v2", "v_lshlrev_b32 v6, 1, v6", "v_xor_b32 v5, v5, v6", "v_lshl_add_u32 v8, v5, 4, v4"]
        o += [f"v_add_u32 v{8+q}, {q*(8*896 - 1024)}, v8" for q in range(1, 4)]
        o += ["s_lshl_b32 s28, s20, 13", "s_lshl_b32 s29, s26, 16", "s_add_u32 s29, s29, s28", f"s_add_u32 s29, s29, {WS_OF}", "s_lshl_b32 s30, s27, 7", f"s_add_u32 s31, s30, {32*896}",
              "s_waitcnt lgkmcnt(0)", "s_mov_b32 s10, 0x10000000", "s_mov_b32 s11, 0x20000",
              "s_mov_b32 s16, s4", "s_mov_b32 s17, s5", f"s_mov_b32 s18, {448*896}", "s_mov_b32 s19, 0x20000"]
        for hf in range(2):
            o += [f"s_add_u32 m0, s28, {65536 + hf*4096}", "s_nop 0"] + [f"buffer_load_dwordx4 v3, s[8:11], s29 offen offset:{q*1024} lds" for q in range(4)] + ["s_add_u32 s29, s29, 4096"]
        for hf in range(2):
            o += [f"s_add_u32 m0, s28, {hf*4096}", "s_nop 0"] + [f"buffer_load_dwordx4 v{8+q}, s[16:19], s{30+hf} offen offset:{q*1024} lds" for q in range(4)]
        for h in range(16):
            if h and h % 4 == 0: o.append("s_add_u32 s22, s22, 4096")
            o.append(f"buffer_load_dwordx4 v[{16+4*h}:{19+4*h}], v3, s[8:11], s22 offen offset:{(h % 4)*1024}")
        o += ["s_mov_b32 s12, s6", "s_mov_b32 s13, s7", f"s_mov_b32 s14, {2048*1792}", "s_mov_b32 s15, 0x20000",
              f"s_mul_hi_u32 s23, s21, {(2**32 + 13)//14}", "s_mul_i32 s24, s23, 14", "s_sub_u32 s24, s21, s24",
              f"s_mul_i32 s23, s23, {16*1792}", "s_lshl_b32 s24, s24, 6", "s_add_u32 s23, s23, s24",
              "v_and_b32 v4, 15, v0", "v_mul_u32_u24 v4, 1792, v4", "v_bfe_u32 v5, v0, 4, 1", "v_lshl_add_u32 v4, v5, 5, v4",
              "v_bfe_u32 v5, v0, 5, 1", "v_lshl_add_u32 v4, v5, 4, v4"]
        o += ["s_lshr_b32 s32, s20, 1", "s_and_b32 s33, s20, 1", "s_lshl_b32 s34, s26, 2", "s_add_u32 s34, s34, s32", f"s_mul_i32 s34, s34, {16*1792}",
              "s_add_u32 s34, s34, s30", "s_lshl_b32 s33, s33, 6", "s_add_u32 s34, s34, s33", "s_add_u32 s34, s34, 896",
              "s_lshl_b32 s32, s32, 14", "s_add_u32 s32, s32, 65536", "v_add_u32 v12, s32, v3",
              "v_bfe_u32 v5, v0, 2, 4", "v_bfe_u32 v6, v0, 3, 2", "v_and_b32 v7, 3, v0", "v_lshlrev_b32 v5, 7, v5", "v_lshl_add_u32 v5, v6, 5, v5", "v_lshl_add_u32 v5, v7, 3, v5",
              "v_xor_b32 v8, s33, v5", "v_xor_b32 v9, 32, v8", "v_xor_b32 v10, 64, v8", "v_xor_b32 v11, 96, v8"]
        o += ["s_waitcnt vmcnt(16)", "s_barrier"]
        F = lambda h, i: R("v", 96 + ((h % 4)*3 + i)*4, 4)
        rd = lambda h: ([f"ds_read_b128 {F(h, 2)}, v12 offset:{h*1024}"] +
                        [f"ds_read_b64_tr_b16 {F(h, nb)[2*u:2*u+2]}, v{8 + (nb ^ (2*(h % 2)))} offset:{(28*h + 16*u)*128}" for nb in range(2) for u in range(2)])
        g = rd(0) + rd(1) + rd(2)
        body = []
        for h in range(16):
            body += [mfma(R("v", 80 + 4*nb, 4), F(h, nb), F(h, 2), 0 if h == 0 else None) for nb in range(2)]
            if h + 3 < 16: body += rd(h + 3)
        o += g + add_lgkm(body, g) + ["s_nop 7"]
        o += [f"v_cvt_pk_bf16_f32 v{80+k}, v{80+2*k}, v{81+2*k}" for k in range(4)]
        o += ["s_nop 1", "v_permlane16_swap_b32 v80, v82", "v_permlane16_swap_b32 v81, v83", "buffer_store_dwordx4 v[80:83], v4, s[12:15], s34 offen"]
        for h in range(16):
            o.append(f"s_waitcnt vmcnt({16-h})")
            for k in range(4):
                r = 16 + 4*h + k
                if h == 0: o += [f"v_lshlrev_b32 v{88+2*k}, 16, v{r}", f"v_and_b32 v{89+2*k}, 0xffff0000, v{r}"]
                else: o += [f"v_lshlrev_b32 v6, 16, v{r}", f"v_and_b32 v7, 0xffff0000, v{r}", f"v_pk_add_f32 v[{88+2*k}:{89+2*k}], v[{88+2*k}:{89+2*k}], v[6:7]"]
        o += [f"v_cvt_pk_bf16_f32 v{16+k}, v{88+2*k}, v{89+2*k}" for k in range(4)]
        o += ["s_nop 1", "v_permlane16_swap_b32 v16, v18", "v_permlane16_swap_b32 v17, v19", "buffer_store_dwordx4 v[16:19], v4, s[12:15], s23 offen"]
        if s.stamps:
            o += ["s_waitcnt vmcnt(0)", "s_memrealtime s[42:43]", "s_waitcnt lgkmcnt(0)", "v_mov_b32 v8, s40", "v_mov_b32 v9, s42", "v_mov_b32 v10, 0",
                  "s_lshl_b32 s21, s21, 3", f"s_add_u32 s21, s21, {WS_STAMP + 131072}", "buffer_store_dwordx2 v[8:9], v10, s[8:11], s21 offen"]
        o += ["K3_END:", "s_endpgm"]
        return o, check(o, "K3")
```

```python
import sys
from fw import *
import k1, k2, k3
NAME = "concat_heads__compressed_kv_cla__linear_kernel_hedgehog__prompt"
def make(path, stamps=False):
    parts = [(k1.K1(stamps), "proj_kernel", 256, 256, 163840, 512, 256), (k2.K2(stamps), "attn_kernel", 256, 256, 131072 + 1024, 512, 256),
             (k3.K3(stamps), "tail_kernel", k3.K3.NWG, 512, 131072, 144, 144)]
    ref = open(f"cdna_kernels/{NAME}.s.ref").read().split("\n")
    head = [x for x in ref if x.startswith(";   offset") or x.startswith("; Kernarg")]
    head += [f"; @launch kernel={n} grid=({g},1,1) block=({b},1,1) lds={l}" for _, n, g, b, l, _, _ in parts]
    txt = head + ['.amdgcn_target "amdgcn-amd-amdhsa--gfx950"', ".text"]
    for k, n, *_ in parts:
        o, P = k.build(n)
        if not stamps:
            for p in P[:10]: print(p)
        txt += [x.split(" ; @")[0] for x in o]
    txt += [".fill 8192, 4, 0xbf800000", "s_endpgm", '.section .rodata,"a"'] + [kd(n, v, a) for _, n, _, _, _, v, a in parts]
    open(path, "w").write("\n".join(txt) + "\n")
if __name__ == "__main__":
    make("all.s"); make("all_st.s", True)
```
